```python
import torch

def _softmax(x, axis=-1):
    return torch.softmax(x, dim=axis)

def _gelu(x):
    return torch.nn.functional.gelu(x, approximate='tanh')

def _silu(x):
    return torch.nn.functional.silu(x)

def _sigmoid(x):
    return torch.sigmoid(x)

def _layernorm(x, axis=-1, eps=1e-05):
    m = x.mean(dim=axis, keepdim=True)
    v = x.var(dim=axis, keepdim=True, unbiased=False)
    return (x - m) / torch.sqrt(v + eps)

def _scatter_add(tgt, idx, src, axis=0):
    return tgt.clone().index_add_(axis, idx, src)

def _segment_sum(src, seg, n):
    out = torch.zeros((n,) + src.shape[1:], dtype=src.dtype)
    return out.index_add_(0, seg, src)

def _pad(x, pw):
    flat = tuple((v for pair in reversed(pw) for v in pair))
    return torch.nn.functional.pad(x, flat)
kernel_name = 'adaLN_cond__gqa_block_cached__glu_gated_geglu__prompt'

def setup_inputs():

    _w = lambda a: (lambda t: t.to(torch.bfloat16) if t.is_floating_point() else t)(torch.as_tensor(a))

    def _A_setup():
        B, Sq, D = (1, 2048, 576)
        Hq, Hkv, Sk, Dh = (32, 16, 2048, 128)
        assert Hq % Hkv == 0, (Hq, Hkv)
        return {'x': _w((lambda *s: torch.randn(*s, dtype=torch.bfloat16) * 0.05)(B, Sq, D)), 'k_cache': _w((lambda *s: torch.randn(*s, dtype=torch.bfloat16) * 0.8)(B, Hkv, Sk, Dh)), 'v_cache': _w((lambda *s: torch.randn(*s, dtype=torch.bfloat16) * 3.2)(B, Hkv, Sk, Dh)), 'wq': _w((lambda *s: torch.randn(*s, dtype=torch.bfloat16) * 0.8)(D, Hq * Dh) * D ** (-0.5)), 'wo': _w((lambda *s: torch.randn(*s, dtype=torch.bfloat16) * 3.2)(Hq * Dh, D) * (Hq * Dh) ** (-0.5))}
    _A_in = _A_setup()

    def _B_setup():
        B, S, Dm, Df = (1, 2048, 576, 4608)
        return {'x': _w((lambda *s: torch.randn(*s, dtype=torch.bfloat16) * 0.05)(B, S, Dm)), 'w_gate': _w((lambda *s: torch.randn(*s, dtype=torch.bfloat16) * 3.2)(Dm, Df) * Dm ** (-0.5)), 'w_up': _w((lambda *s: torch.randn(*s, dtype=torch.bfloat16) * 3.2)(Dm, Df) * Dm ** (-0.5)), 'w_down': _w((lambda *s: torch.randn(*s, dtype=torch.bfloat16) * 3.2)(Df, Dm) * Df ** (-0.5))}
    _B_in = _B_setup()
    return {'A_x': _A_in['x'], 'A_k_cache': _A_in['k_cache'], 'A_v_cache': _A_in['v_cache'], 'A_wq': _A_in['wq'], 'A_wo': _A_in['wo'], 'B_x': _B_in['x'], 'B_w_gate': _B_in['w_gate'], 'B_w_up': _B_in['w_up'], 'B_w_down': _B_in['w_down'], 'c': _w((lambda *s: torch.randn(*s, dtype=torch.bfloat16) * 0.4)(1, 576) * 8.0), 'w_mod': _w((lambda *s: torch.randn(*s, dtype=torch.bfloat16) * 0.4)(576, 6 * 576) * 576 ** (-0.5) * 8.0)}

def reference(A_x, A_k_cache, A_v_cache, A_wq, A_wo, B_x, B_w_gate, B_w_up, B_w_down, c, w_mod):

    def _A_ref(x, k_cache, v_cache, wq, wo):
        B, Sq, D = x.shape
        Hq, Dh = (32, 128)
        Hkv = k_cache.shape[1]
        rep = Hq // Hkv
        q = (lambda x, *d: x.permute(*d))((x @ wq).reshape(B, Sq, Hq, Dh), 0, 2, 1, 3)
        k = (lambda x, n, axis: torch.repeat_interleave(x, n, dim=axis))(k_cache, rep, axis=1)
        v = (lambda x, n, axis: torch.repeat_interleave(x, n, dim=axis))(v_cache, rep, axis=1)
        scores = torch.einsum('bhqd,bhkd->bhqk', q, k) * Dh ** (-0.5)
        p = _softmax(scores, axis=-1)
        o = torch.einsum('bhqk,bhkd->bhqd', p, v)
        return (lambda x, *d: x.permute(*d))(o, 0, 2, 1, 3).reshape(B, Sq, Hq * Dh) @ wo

    def _B_ref(x, w_gate, w_up, w_down):
        g = torch.einsum('bsd,df->bsf', x, w_gate)
        u = torch.einsum('bsd,df->bsf', x, w_up)
        h = _gelu(g) * u
        return torch.einsum('bsf,fd->bsd', h, w_down)
    x = A_x
    mod = (_silu(c) @ w_mod).reshape(c.shape[0], 6, 1, -1)
    sa, ca, ga, sb, cb, gb = (mod[:, 0].clone(), mod[:, 1].clone(), mod[:, 2].clone(), mod[:, 3].clone(), mod[:, 4].clone(), mod[:, 5].clone())
    h = _layernorm(x, axis=-1) * (1 + ca) + sa
    x = x + ga * _A_ref(h, A_k_cache, A_v_cache, A_wq, A_wo)
    h = _layernorm(x, axis=-1) * (1 + cb) + sb
    x = x + gb * _B_ref(h, B_w_gate, B_w_up, B_w_down)
    return x
```

```python
class Kern:
    def __init__(self, name, grid, block, lds=0, vgpr=256, agpr=0, sgpr=102):
        self.name = name; self.grid = grid; self.block = block; self.lds = lds
        self.vgpr = vgpr; self.agpr = agpr; self.sgpr = sgpr
        self.lines = []
        self._lab = 0
    def __call__(self, s):
        for l in s.split('\n'):
            l = l.strip()
            if l:
                self.lines.append(l if l.endswith(':') else '    ' + l)
    def label(self, base='L'):
        self._lab += 1
        return f'{base}_{self.name}_{self._lab}'
    def text(self):
        return (f'.globl {self.name}\n.p2align 8\n.type {self.name},@function\n{self.name}:\n' +
                '\n'.join(self.lines) + '\n')
    def desc(self):
        acc = (self.vgpr + 3) // 4 * 4
        nfv = acc + self.agpr if self.agpr else self.vgpr
        return f'''.p2align 6
.amdhsa_kernel {self.name}
  .amdhsa_next_free_vgpr {nfv}
  .amdhsa_next_free_sgpr {self.sgpr}
  .amdhsa_accum_offset {acc}
  .amdhsa_group_segment_fixed_size 0
  .amdhsa_kernarg_size 112
  .amdhsa_user_sgpr_count 2
  .amdhsa_user_sgpr_kernarg_segment_ptr 1
  .amdhsa_system_sgpr_workgroup_id_x 1
  .amdhsa_float_denorm_mode_32 3
  .amdhsa_float_denorm_mode_16_64 3
.end_amdhsa_kernel
'''

def assemble_file(kernels, launches=None, header=''):
    if launches is None: launches = kernels
    out = []
    if header: out.append(header.rstrip('\n'))
    for k in launches:
        out.append(f'; @launch kernel={k.name} grid=({k.grid},1,1) block=({k.block},1,1) lds={k.lds}')
    out.append('.amdgcn_target "amdgcn-amd-amdhsa--gfx950"')
    out.append('.text')
    for k in kernels: out.append(k.text())
    out.append('.section .rodata,"a"')
    for k in kernels: out.append(k.desc())
    return '\n'.join(out)

def srd(k, d, ptr, nbytes):
    k(f's_mov_b32 s{d}, s{ptr}')
    k(f's_and_b32 s{d+1}, s{ptr+1}, 0xffff')
    k(f's_mov_b32 s{d+2}, {nbytes}')
    k(f's_mov_b32 s{d+3}, 0x00020000')
```

```python
class Kern:
    def __init__(self, name, grid, block, lds=0, vgpr=256, agpr=0, sgpr=102):
        self.name = name; self.grid = grid; self.block = block; self.lds = lds
        self.vgpr = vgpr; self.agpr = agpr; self.sgpr = sgpr
        self.lines = []
        self._lab = 0
    def __call__(self, s):
        for l in s.split('\n'):
            l = l.strip()
            if l:
                self.lines.append(l if l.endswith(':') else '    ' + l)
    def label(self, base='L'):
        self._lab += 1
        return f'{base}_{self.name}_{self._lab}'
    def text(self):
        return (f'.globl {self.name}\n.p2align 8\n.type {self.name},@function\n{self.name}:\n' +
                '\n'.join(self.lines) + '\n')
    def desc(self):
        acc = (self.vgpr + 3) // 4 * 4
        nfv = acc + self.agpr if self.agpr else self.vgpr
        return f'''.p2align 6
.amdhsa_kernel {self.name}
  .amdhsa_next_free_vgpr {nfv}
  .amdhsa_next_free_sgpr {self.sgpr}
  .amdhsa_accum_offset {acc}
  .amdhsa_group_segment_fixed_size 0
  .amdhsa_kernarg_size 112
  .amdhsa_user_sgpr_count 2
  .amdhsa_user_sgpr_kernarg_segment_ptr 1
  .amdhsa_system_sgpr_workgroup_id_x 1
  .amdhsa_float_denorm_mode_32 3
  .amdhsa_float_denorm_mode_16_64 3
.end_amdhsa_kernel
'''

def assemble_file(kernels, launches=None, header=''):
    if launches is None: launches = kernels
    out = []
    if header: out.append(header.rstrip('\n'))
    for k in launches:
        out.append(f'; @launch kernel={k.name} grid=({k.grid},1,1) block=({k.block},1,1) lds={k.lds}')
    out.append('.amdgcn_target "amdgcn-amd-amdhsa--gfx950"')
    out.append('.text')
    for k in kernels: out.append(k.text())
    out.append('.section .rodata,"a"')
    for k in kernels: out.append(k.desc())
    return '\n'.join(out)

def srd(k, d, ptr, nbytes):
    k(f's_mov_b32 s{d}, s{ptr}')
    k(f's_and_b32 s{d+1}, s{ptr+1}, 0xffff')
    k(f's_mov_b32 s{d+2}, {nbytes}')
    k(f's_mov_b32 s{d+3}, 0x00020000')

class E(Kern):
    def __init__(self, *a, **kw):
        super().__init__(*a, **kw)
        self.vq = []; self.lq = []
    def ds(self, text, tag=None):
        self(text); self.lq.append(tag)
    def vm(self, text, tag=None):
        self(text); self.vq.append(tag)
    def wait(self, vm=(), lg=(), vm0=False, lg0=False, force=False):
        parts = []
        def cnt(q, tags, all_, mx):
            if all_: return 0 if (q or force) else None
            idx = [i for i, t in enumerate(q) if t in tags]
            if not idx: return None
            return min(len(q) - 1 - max(idx), mx)
        a = cnt(self.vq, set(vm), vm0, 63)
        if a is not None:
            parts.append(f'vmcnt({a})'); self.vq = self.vq[len(self.vq) - a:] if a else []
        b = cnt(self.lq, set(lg), lg0, 15)
        if b is not None:
            parts.append(f'lgkmcnt({b})'); self.lq = self.lq[len(self.lq) - b:] if b else []
        if parts: self('s_waitcnt ' + ' '.join(parts))
        return bool(parts)
    def item(self, it):
        if isinstance(it, str): self(it)
        elif callable(it): it()
        elif it[0] == 'ds': self.ds(it[1], it[2])
        elif it[0] == 'vm': self.vm(it[1], it[2])
        elif it[0] == 'wait': self.wait(**it[1])
        else: raise ValueError(it)

def cost(it):
    if isinstance(it, str):
        mn = it.split()[0]
        if mn.endswith(':'): return 0
        if mn in ('v_exp_f32', 'v_rcp_f32', 'v_rsq_f32', 'v_log_f32'): return 8
        return 4
    if it[0] == 'vm': return 12
    return 4

def flow(gaps, stream, g0, g1, hard=24):
    base = [sum(cost(i) for i in g) for g in gaps]
    tot = sum(cost(i) for i in stream)
    lo, hi = 0.0, 1000.0
    for _ in range(40):
        L = (lo + hi) / 2
        if sum(max(0, L - base[g]) for g in range(g0, g1 + 1)) >= tot: hi = L
        else: lo = L
    L = hi
    best = None
    for H in range(hard, 400, 4):
        for bias in (0.5, 0.25, 0.0, -0.5, -1, -2, -4):
            out = [[] for _ in gaps]; i = 0; cum = 0; done = 0
            for g in range(g0, g1 + 1):
                cum += max(0, L - base[g]); load = base[g]
                while i < len(stream) and load + cost(stream[i]) <= H and (done + bias * cost(stream[i]) <= cum + 1e-6):
                    out[g].append(stream[i]); load += cost(stream[i]); done += cost(stream[i]); i += 1
            if i == len(stream): return out, (round(L, 1), H)
    raise ValueError('does not fit')

def vr(a, n=1): return f'v{a}' if n == 1 else f'v[{a}:{a+n-1}]'
def ar(a, n=1): return f'a{a}' if n == 1 else f'a[{a}:{a+n-1}]'
def sr(a, n=1): return f's{a}' if n == 1 else f's[{a}:{a+n-1}]'

def txt(it): return it if isinstance(it, str) else (it[1] if it[0] != 'wait' else 's_waitcnt')
def klass(it):
    t = txt(it)
    if t.endswith(':') or t.startswith('s_'): return 0
    if t.startswith(('ds_', 'buffer_', 'global_')): return 1
    return 2
def units(it):
    t = txt(it); mn = t.split()[0]
    if klass(it) == 0: return 0
    if mn in ('v_exp_f32', 'v_rcp_f32', 'v_rsq_f32', 'v_log_f32') or mn.startswith(('buffer_', 'global_')): return 2
    return 1
def gload(g):
    ns = sum(1 for i in g if klass(i) == 0 and not txt(i).endswith(':'))
    return sum(units(i) for i in g) + max(0, ns - 1)
def gsort(g):
    return sorted(g, key=klass)
def pour(gaps, stream, g0, g1, cap=2):
    tot = sum(units(i) for i in stream)
    base = [gload(g) for g in gaps]
    lo, hi = 0.0, 100.0
    for _ in range(40):
        L = (lo + hi) / 2
        if sum(max(0, L - base[g]) for g in range(g0, g1 + 1)) >= tot: hi = L
        else: lo = L
    L = hi
    for H in range(cap, 60):
        for bias in (0.5, 0.25, 0.0, -0.5, -1, -2, -4):
            out = [[] for _ in gaps]; i = 0; cum = 0; done = 0
            for g in range(g0, g1 + 1):
                cum += max(0, L - base[g])
                while i < len(stream):
                    j = i
                    while j < len(stream) - 1 and units(stream[j]) == 0: j += 1
                    grp = stream[i:j+1]
                    if len(grp) > 1 and out[g]: break
                    u = units(stream[j])
                    if gload(gaps[g] + out[g] + grp) <= H and done + bias * u <= cum + 1e-6:
                        out[g] += grp; done += u; i = j + 1
                    else: break
            if i == len(stream):
                for g in range(g0, g1 + 1): gaps[g] += out[g]
                return (round(L, 2), H)
    raise ValueError('does not fit')
```

```python
import re, sys
TRANS = ('v_exp_f32','v_log_f32','v_rcp_f32','v_rsq_f32','v_sqrt_f32','v_sin_f32','v_cos_f32')
def regs(op):
    op = op.strip()
    op = op.lstrip('-').strip('|')
    m = re.fullmatch(r'([vas])\[(\d+):(\d+)\]', op)
    if m: return {(m.group(1), i) for i in range(int(m.group(2)), int(m.group(3)) + 1)}
    m = re.fullmatch(r'([vas])(\d+)', op)
    if m: return {(m.group(1), int(m.group(2)))}
    if op == 'vcc': return {('s', 106), ('s', 107)}
    if op == 'vcc_lo': return {('s', 106)}
    if op == 'vcc_hi': return {('s', 107)}
    if op == 'm0': return {('s', 124)}
    if op == 'exec': return {('s', 126), ('s', 127)}
    if op == 'exec_lo': return {('s', 126)}
    if op == 'exec_hi': return {('s', 127)}
    return set()
class I:
    def __init__(self, text, ln):
        self.text = text; self.ln = ln
        t = text.split(';')[0].strip()
        p = t.split(None, 1)
        self.mn = p[0]
        rest = p[1] if len(p) > 1 else ''
        ops = [o.strip() for o in rest.split(',')] if rest else []
        self.mods = ''
        if ops:
            last = ops[-1].split(None, 1)
            m = re.search(r'\s(op_sel|op_sel_hi|offset|offen|lds|row_|quad_perm|neg_|clamp|sc0|sc1|nt|dst_sel|src0_sel|src1_sel|off\b|glc|bank_mask|bound_ctrl|wave_|mul:|div:)', rest)
            if m:
                self.mods = rest[m.start():]; rest = rest[:m.start()]
                ops = [o.strip() for o in rest.split(',')]
        self.ops = ops
        mn = self.mn
        self.kind = 'other'; self.w = set(); self.r = set(); self.c = set(); self.ab = set()
        self.states = 1
        R = [regs(o) for o in ops]
        U = lambda l: set().union(*l) if l else set()
        if mn.startswith('v_mfma'):
            self.kind = 'mfma'; self.w = R[0]; self.ab = R[1] | R[2]; self.c = R[3]; self.r = self.ab | self.c
            self.passes = 8 if '32x32' in mn else 4
        elif mn.startswith('v_'):
            self.kind = 'valu'
            if mn == 'v_nop': pass
            elif mn.startswith('v_permlane'):
                self.w = U(R); self.r = U(R)
            elif mn.startswith('v_cmp'):
                self.w = R[0]; self.r = U(R[1:])
            elif mn.startswith(('v_add_co','v_sub_co','v_addc_co','v_subb_co')):
                self.w = R[0] | R[1]; self.r = U(R[2:])
            else:
                self.w = R[0]; self.r = U(R[1:])
                if mn.startswith(('v_fmac','v_mac','v_dot2c','v_writelane','v_fma_mixlo','v_fma_mixhi')) or 'dst_sel' in self.mods or 'row_' in self.mods or 'quad_perm' in self.mods: self.r |= R[0]
                if mn.startswith('v_cndmask') and len(ops) == 3: self.r |= regs('vcc')
            self.dpp = ('row_' in self.mods or 'quad_perm' in self.mods or 'wave_' in self.mods)
        elif mn.startswith('ds_'):
            self.kind = 'ds'
            if mn.startswith(('ds_read','ds_bpermute','ds_swizzle','ds_permute')): self.w = R[0]; self.r = U(R[1:])
            else: self.r = U(R)
        elif mn.startswith(('buffer_','global_')):
            self.kind = 'vmem'
            self.lds = bool(re.search(r'\blds\b', self.mods)) or '_lds_' in mn
            if 'load' in mn and not self.lds: self.w = R[0]; self.r = U(R[1:])
            else: self.r = U(R)
            if self.lds: self.r |= regs('m0')
            self.wide_store = ('store' in mn and ('x4' in mn or 'x3' in mn))
            self.data = (R[0] if mn.startswith('buffer_') else R[1]) if 'store' in mn else set()
        elif mn.startswith('s_'):
            self.kind = 'salu'
            if mn == 's_nop': self.states = int(ops[0], 0) + 1
            elif mn.startswith(('s_load','s_buffer_load','s_memtime','s_memrealtime','s_atomic')):
                self.kind = 'smem'; self.w = R[0]; self.r = U(R[1:])
            elif mn.startswith(('s_cmp','s_cbranch','s_branch','s_waitcnt','s_barrier','s_endpgm','s_setprio','s_sleep','s_setpc','s_bitcmp')):
                self.r = U(R)
            else:
                self.w = R[0] if R else set(); self.r = U(R[1:])
                if 'saveexec' in mn: self.w |= regs('exec')
def need(p, c):
    n = 0
    vg = lambda s: {x for x in s if x[0] in 'va'}
    sg = lambda s: {x for x in s if x[0] == 's'}
    if p.kind == 'valu':
        if c.kind == 'mfma' and vg(p.w) & c.r: n = max(n, 2)
        if c.kind == 'mfma' and p.w & regs('exec'): n = max(n, 4)
        if c.kind == 'valu':
            if p.mn.startswith(TRANS) and (p.w & c.r) and not c.mn.startswith(TRANS): n = max(n, 1)
            if c.mn.startswith('v_permlane') and vg(p.w) & c.r: n = max(n, 2)
            if c.dpp and vg(p.w) & c.r: n = max(n, 2)
            if c.mn.startswith(('v_readlane','v_readfirstlane')) and vg(p.w) & c.r: n = max(n, 1)
            if sg(p.w) & c.r: n = max(n, 4 if c.mn.startswith(('v_readlane','v_writelane')) else 2)
            if ('dst_sel' in p.mods or p.mn.startswith(('v_fma_mixhi','v_fma_mixlo')) or re.search(r'op_sel:\[[01],[01],[01],1\]|op_sel:\[[01],1\]$', p.mods)) and p.w & (c.r | c.w): n = max(n, 1)
        if c.kind == 'vmem' and sg(p.w) & c.r: n = max(n, 5)
    if p.kind == 'salu' and ('s', 124) in p.w and c.kind == 'vmem' and c.lds: n = max(n, 1)
    if p.kind == 'vmem' and p.wide_store and p.data & c.w: n = max(n, 2)
    if p.kind == 'mfma':
        big = {4: 8, 8: 12}[p.passes]
        if c.kind == 'mfma':
            if p.w & c.ab: n = max(n, big)
            if p.w & c.c and not (p.w == c.c and p.passes == c.passes): n = max(n, big - 2)
            if p.w & c.w and not (p.w == c.w and p.passes == c.passes): n = max(n, big)
        elif c.kind in ('valu','ds','vmem'):
            if p.w & (c.r | c.w): n = max(n, big)
            if c.kind == 'valu' and p.c & c.w: n = max(n, {4: 3, 8: 7}[p.passes])
    return n
def parse(text):
    ins = []; labels = {}
    for ln, l in enumerate(text.split('\n'), 1):
        t = l.split(';')[0].strip()
        if not t or t.startswith('.'): continue
        if t.endswith(':'): labels[t[:-1]] = len(ins); continue
        ins.append(I(t, ln))
    return ins, labels
def check(text, verbose=True):
    ins, labels = parse(text)
    n = len(ins); errs = []
    pred = [[] for _ in range(n + 1)]
    calls = []; rets = []
    for i, x in enumerate(ins):
        if x.mn == 's_endpgm': continue
        if x.mn.startswith('s_setpc'): rets.append(i); continue
        if x.mn == 's_branch': pred[labels[x.ops[0]]].append(i); continue
        if x.mn.startswith('s_cbranch'): pred[labels[x.ops[0]]].append(i)
        if x.mn.startswith('s_call'):
            pred[labels[x.ops[1]]].append(i); calls.append(i); continue
        pred[i + 1].append(i)
    for c in calls:
        for r in rets: pred[c + 1].append(r)
    for j, c in enumerate(ins):
        if c.kind in ('other',): continue
        stack = [(p, 0) for p in pred[j]]; seen = {}
        while stack:
            p, d = stack.pop()
            if d >= 12 or seen.get(p, 99) <= d: continue
            seen[p] = d
            k = need(ins[p], c)
            if k > d: errs.append(f'hazard: line {ins[p].ln} [{ins[p].text}] -> line {c.ln} [{c.text}] needs {k} has {d}')
            for q in pred[p]: stack.append((q, d + ins[p].states))
    return errs
def check_waits(text, entry, takes=2, forced=()):
    ins, labels = parse(text)
    pc = labels[entry]; cnt = {}; vm = []; lg = []; errs = []; stack = []; steps = 0
    while True:
        x = ins[pc]; steps += 1
        if steps > 2000000: errs.append('walk too long'); break
        touched = x.r | x.w
        for q, nm in ((vm, 'vm'), (lg, 'lgkm')):
            for (y) in q:
                if y.w & touched and not (x.kind == y.kind and x.kind in ('ds','vmem') and not (y.w & x.r)):
                    errs.append(f'{nm} pending: line {y.ln} [{y.text}] touched by line {x.ln} [{x.text}]')
        if x.kind == 'vmem': vm.append(x)
        if x.kind in ('ds', 'smem') and not x.mn.startswith('s_mem'): lg.append(x)
        if x.mn == 's_waitcnt':
            a = ' '.join(x.ops) + x.mods
            m = re.search(r'vmcnt\((\d+)\)', a)
            if m:
                k = int(m.group(1)); vm = vm[len(vm) - k:] if k and k < len(vm) else ([] if k == 0 else vm)
            m = re.search(r'lgkmcnt\((\d+)\)', a)
            if m:
                k = int(m.group(1))
                if k and any(y.kind == 'smem' for y in lg): pass
                else: lg = lg[len(lg) - k:] if k and k < len(lg) else ([] if k == 0 else lg)
        if x.mn == 's_endpgm': break
        if x.mn == 's_branch': pc = labels[x.ops[0]]; continue
        if x.mn.startswith('s_call'): stack.append(pc + 1); pc = labels[x.ops[1]]; continue
        if x.mn.startswith('s_setpc'): pc = stack.pop(); continue
        if x.mn.startswith('s_cbranch'):
            t = labels[x.ops[0]]
            if t <= pc:
                cnt[pc] = cnt.get(pc, 0) + 1
                if cnt[pc] <= takes: pc = t; continue
                cnt[pc] = 0
            elif x.ops[0] in forced:
                cnt[pc] = cnt.get(pc, 0) + 1
                if not isinstance(forced, dict) or cnt[pc] >= forced[x.ops[0]]: pc = t; continue
        pc += 1
    return sorted(set(errs))
if __name__ == '__main__':
    t = open(sys.argv[1]).read()
    e = check(t)
    for m in re.finditer(r'^(\w+_kernel):', t, re.M): e += check_waits(t, m.group(1))
    print('\n'.join(e[:50])); print(len(e), 'problems')
```

```python
import math, struct
from asmlib import *
from layout import *
def f2u(x): return struct.unpack('<I', struct.pack('<f', x))[0]
def build(name='k1_kernel', opt=None):
    opt = opt or {}
    k = E(name, 256, 256, lds=1024, vgpr=128)
    sW, sT0, sT1 = 24, 25, 26
    k(f'''s_cmp_ge_u32 s2, 256
    s_cbranch_scc1 END_{name}
    s_load_dwordx2 s[40:41], s[0:1], 0
    s_load_dwordx4 s[44:47], s[0:1], 72
    s_load_dwordx2 s[42:43], s[0:1], 104
    v_lshrrev_b32 v1, 6, v0
    v_and_b32 v0, 63, v0
    v_readfirstlane_b32 s{sW}, v1
    v_lshrrev_b32 v2, 3, v0
    v_and_b32 v3, 7, v0
    s_cmp_eq_u32 s{sW}, 3
    s_cbranch_scc1 LN_{name}
    s_cmp_ge_u32 s2, 216
    s_cbranch_scc1 END_{name}
    s_and_b32 s{sT0}, s2, 3
    s_lshr_b32 s{sT1}, s2, 2
    s_mul_i32 s27, s{sT0}, 144
    s_mul_i32 s28, s{sW}, 48
    s_add_u32 s27, s27, s28
    s_lshl_b32 s28, s27, 1
    s_mul_i32 s27, s27, 6912
    s_lshl_b32 s29, s{sT1}, 7
    s_add_u32 s27, s27, s29
    v_mul_u32_u24 v4, 6912, v2
    v_lshl_add_u32 v4, v3, 4, v4
    v_lshlrev_b32 v5, 1, v2
    s_waitcnt lgkmcnt(0)''')
    srd(k, 8, 44, 1152); srd(k, 12, 46, 576*6912); srd(k, 16, 42, WS_BYTES)
    for n in range(6): k.vm(f'buffer_load_ushort v{8+n}, v5, s[8:11], s28 offen offset:{16*n}', 'c')
    for n in range(6):
        k.vm(f'buffer_load_dwordx4 v[{32+4*n}:{35+4*n}], v4, s[12:15], s27 offen', f'w{n}')
        if n < 5: k(f's_add_u32 s27, s27, {8*6912}')
    k(f'''s_mul_i32 s27, s{sT0}, {3456*4}
    s_lshl_b32 s29, s{sT1}, 8
    s_add_u32 s27, s27, s29
    s_add_u32 s27, s27, {MODP}
    v_lshrrev_b32 v6, 4, v0
    v_lshlrev_b32 v6, 3, v6
    v_lshl_add_u32 v6, v3, 5, v6
    v_lshl_add_u32 v6, v1, 8, v6
    v_lshlrev_b32 v7, 2, v0''')
    for i in range(8): k(f'v_mov_b32 v{20+i}, 0')
    k.wait(vm=['c'])
    for n in range(6): k(f'v_lshlrev_b32 v{8+n}, 16, v{8+n}')
    for n in range(6): k(f'v_mul_f32 v{14+n}, {f2u(-math.log2(math.e))}, v{8+n}')
    for n in range(6): k(f'v_exp_f32 v{14+n}, v{14+n}')
    for n in range(6): k(f'v_add_f32 v{14+n}, 1.0, v{14+n}')
    for n in range(6): k(f'v_rcp_f32 v{14+n}, v{14+n}')
    for n in range(6): k(f'v_mul_f32 v{8+n}, v{8+n}, v{14+n}')
    for n in range(6): k(f'v_cvt_pk_bf16_f32 v{8+n}, v{8+n}, 0')
    for n in range(6): k(f'v_lshlrev_b32 v{14+n}, 16, v{8+n}')
    for n in range(6):
        k.wait(vm=[f'w{n}'])
        if opt.get('dot2', 1):
            for i in range(4):
                k(f'v_dot2c_f32_bf16 v{20+2*i}, v{32+4*n+i}, v{8+n}')
                k(f'v_dot2c_f32_bf16 v{21+2*i}, v{32+4*n+i}, v{14+n}')
        else:
            for i in range(4):
                k(f'v_lshlrev_b32 v28, 16, v{32+4*n+i}')
                k(f'v_and_b32 v29, 0xffff0000, v{32+4*n+i}')
                k(f'v_fmac_f32 v{20+2*i}, v28, v{14+n}')
                k(f'v_fmac_f32 v{21+2*i}, v29, v{14+n}')
    k('s_nop 3')
    for i in range(4): k(f'v_permlane32_swap_b32 v{20+i}, v{24+i}')
    for i in range(4): k(f'v_add_f32 v{20+i}, v{20+i}, v{24+i}')
    k('s_nop 0')
    for i in range(2): k(f'v_permlane16_swap_b32 v{20+i}, v{22+i}')
    for i in range(2): k(f'v_add_f32 v{20+i}, v{20+i}, v{22+i}')
    k('s_nop 0')
    for i in range(2): k(f'v_add_f32_dpp v{20+i}, v{20+i}, v{20+i} row_ror:8 row_mask:0xf bank_mask:0xf')
    k.ds('ds_write_b64 v6, v[20:21]')
    k.wait(lg0=True)
    k(f'''s_barrier
    s_cmp_lg_u32 s{sW}, 0
    s_cbranch_scc1 END_{name}''')
    for w in range(3): k.ds(f'ds_read_b32 v{20+w}, v7 offset:{256*w}')
    k.wait(lg0=True)
    k('''v_add_f32 v20, v20, v21
    v_add_f32 v20, v20, v22
    buffer_store_dword v20, v7, s[16:19], s27 offen''')
    k(f'END_{name}:')
    k('s_endpgm')
    k(f'LN_{name}:')
    k.vq = []; k.lq = []
    k(f'''v_mul_u32_u24 v4, 1152, v3
    v_lshl_add_u32 v4, v2, 4, v4
    s_mul_i32 s27, s2, {8*1152}
    s_waitcnt lgkmcnt(0)''')
    srd(k, 8, 40, 2048*1152); srd(k, 16, 42, WS_BYTES)
    for n in range(9): k.vm(f'buffer_load_dwordx4 v[{8+4*n}:{11+4*n}], v4, s[8:11], s27 offen offset:{128*n}', f'x{n}')
    k(f'''s_lshr_b32 s28, s2, 1
    s_mul_i32 s28, s28, 18432
    s_and_b32 s29, s2, 1
    s_lshl_b32 s29, s29, 7
    s_add_u32 s28, s28, s29
    v_lshlrev_b32 v5, 4, v3
    v_lshl_add_u32 v5, v2, 8, v5''')
    if XN: k(f's_add_u32 s28, s28, {XN}')
    X = 48
    def allred(r, t):
        k('s_nop 1')
        k(f'v_add_f32_dpp v{r}, v{r}, v{r} row_ror:8 row_mask:0xf bank_mask:0xf')
        for sw in ('16', '32'):
            k(f'v_mov_b32 v{t}, v{r}'); k('s_nop 1')
            k(f'v_permlane{sw}_swap_b32 v{r}, v{t}')
            k(f'v_add_f32 v{r}, v{r}, v{t}')
    for n in range(9):
        k.wait(vm=[f'x{n}'])
        for i in range(4):
            k(f'v_lshlrev_b32 v{X+8*n+2*i}, 16, v{8+4*n+i}')
            k(f'v_and_b32 v{X+8*n+2*i+1}, 0xffff0000, v{8+4*n+i}')
        for i in range(2):
            a = X + 8*n + 4*i
            if n == 0: k(f'v_pk_add_f32 v[{44+2*i}:{45+2*i}], v[{a}:{a+1}], v[{a+2}:{a+3}]')
            else:
                k(f'v_pk_add_f32 v[44:45], v[44:45], v[{a}:{a+1}]')
                k(f'v_pk_add_f32 v[46:47], v[46:47], v[{a+2}:{a+3}]')
    k('v_pk_add_f32 v[44:45], v[44:45], v[46:47]')
    k('v_add_f32 v44, v44, v45')
    allred(44, 45)
    k(f'v_mul_f32 v6, {f2u(-1/576)}, v44')
    for i in range(36):
        a = X + 2*i; d = 44 + 2*(i & 1)
        k(f'v_pk_add_f32 v[{a}:{a+1}], v[{a}:{a+1}], v[6:7] op_sel_hi:[1,0]')
        if i >= 1:
            a -= 2
            if i < 3: k(f'v_pk_mul_f32 v[{d}:{d+1}], v[{a}:{a+1}], v[{a}:{a+1}]')
            else: k(f'v_pk_fma_f32 v[{d}:{d+1}], v[{a}:{a+1}], v[{a}:{a+1}], v[{d}:{d+1}]')
    a = X + 70
    k(f'v_pk_fma_f32 v[44:45], v[{a}:{a+1}], v[{a}:{a+1}], v[44:45]')
    k('v_pk_add_f32 v[44:45], v[44:45], v[46:47]')
    k('v_add_f32 v44, v44, v45')
    allred(44, 45)
    k(f'v_mov_b32 v45, {f2u(1e-5)}')
    k(f'v_fmac_f32 v45, {f2u(1/576)}, v44')
    k('v_rsq_f32 v6, v45')
    k('s_barrier')
    for n in range(9):
        for i in range(4):
            a = X + 8*n + 2*i
            k(f'v_pk_mul_f32 v[{a}:{a+1}], v[{a}:{a+1}], v[6:7] op_sel_hi:[1,0]')
        for i in range(4):
            a = X + 8*n + 2*i
            k(f'v_cvt_pk_f16_f32 v{8+4*n+i}, v{a}, v{a+1}')
        k(f'buffer_store_dwordx4 v[{8+4*n}:{11+4*n}], v5, s[16:19], s28 offen offset:{(n&1)*2048}')
        if n & 1: k('s_add_u32 s28, s28, 4096')
    k('s_endpgm')
    return k
if __name__ == '__main__':
    import chk
    k = build(); t = assemble_file([k]); open('k1.s', 'w').write(t)
    e = chk.check(t) + chk.check_waits(t, k.name) + chk.check_waits(t, k.name, forced=[f'LN_{k.name}'])
    print('\n'.join(e[:40])); print(len(e), 'problems')
```

```python
import math, struct
from asmlib import *
from layout import *
def f2u(x): return struct.unpack('<I', struct.pack('<f', x))[0]
MF = 'v_mfma_f32_16x16x32_bf16'
MARGIN = 20.0
THR = 2.0 ** 30
SK, SV, SW, SWS = 8, 12, 16, 20
sW, sG, sRB, sKO, sMB, sT0, sT1, sTHR, sRET, sXO, sWO, sW4K, sMRG, sOO = 24, 25, 26, 27, 28, 29, 30, 31, 32, 34, 36, 37, 38, 48
vWA, vCS, vWV, vL16, vT0 = 1, 9, 10, 14, 15
vKV0, vKV1, vVV0, vVV1 = 10, 11, 12, 13
ACC = 16
S = [16, 48]; NM = 80; L = [96, 112]; P = [128, 144]; Q = 160
CSB = [224, 240]; HB = [144, 152]
vTM = 1
vKA, vVA, vE, vMX = 224, 228, 236, 244
aK, aV, aRING, aONE, aPARK = 128, 160, 192, 192, 160
TBL = 131072

def build(name='k2_kernel', stamps=False, opt=None):
    opt = opt or {}
    k = E(name, 256, 256, lds=131072 + 8192, vgpr=256, agpr=256)
    nst = [0]
    def stamp():
        if stamps:
            k(f's_memtime s[{60 + 2*nst[0]}:{61 + 2*nst[0]}]'); nst[0] += 1
    def emit(mfs, gaps):
        for m, g in zip(mfs, gaps):
            k(m)
            for it in gsort(g): k.item(it)
    k(f's_cmp_ge_u32 s2, 256')
    k(f's_cbranch_scc1 END_{name}')
    stamp()
    if stamps: k('s_memrealtime s[90:91]')
    k('s_load_dwordx4 s[40:43], s[0:1], 8')
    k('s_load_dwordx2 s[44:45], s[0:1], 24')
    k('s_load_dwordx2 s[46:47], s[0:1], 104')
    k(f'''v_lshrrev_b32 v{vT0}, 6, v0
    s_and_b32 s{sT0}, s2, 7
    v_readfirstlane_b32 s{sW}, v{vT0}
    s_lshr_b32 s{sT1}, s2, 3
    s_lshl_b32 s{sG}, s{sT0}, 1
    s_and_b32 s{sT0}, s{sT1}, 1
    s_or_b32 s{sG}, s{sG}, s{sT0}
    s_lshr_b32 s{sRB}, s{sT1}, 1
    v_lshlrev_b32 v16, 4, v0
    v_and_b32 v0, 63, v0
    v_lshlrev_b32 v{vL16}, 4, v0
    s_lshl_b32 s{sW4K}, s{sW}, 12''')
    k(f'''v_lshrrev_b32 v17, 5, v0
    v_and_b32 v18, 31, v0
    v_lshlrev_b32 v18, 4, v18
    v_lshlrev_b32 v19, 5, v17
    v_xor_b32 v18, v18, v19
    v_lshl_add_u32 v18, v17, 13, v18
    s_lshr_b32 s{sT0}, s{sW}, 1
    s_lshl_b32 s{sT0}, s{sT0}, 18
    s_and_b32 s{sT1}, s{sW}, 1
    s_lshl_b32 s{sT1}, s{sT1}, 15
    s_add_u32 s{sT0}, s{sT0}, s{sT1}
    v_add_u32 v{vWV}, s{sT0}, v18''')
    for i in range(1, 4):
        k(f'v_xor_b32 v18, {64*i}, v{vWV}')
        k(f'v_add_u32 v{vWV+i}, {(8*(i>>1) + 2*(i&1))*8192 - i*1024}, v18')
    k(f'''s_lshl_b32 s{sMB}, s{sW}, 13
    s_lshl_b32 s{sXO}, s{sRB}, 2
    s_add_u32 s{sXO}, s{sXO}, s{sW}
    s_mul_i32 s{sXO}, s{sXO}, 36864''')
    if XN: k(f's_add_u32 s{sXO}, s{sXO}, {XN}')
    k(f's_add_u32 s{sXO+1}, s{sXO}, 18432')
    k('s_waitcnt lgkmcnt(0)')
    k(f'''s_mov_b32 s{SWS}, s46
    s_and_b32 s{SWS+1}, s47, 0xffff
    s_mov_b32 s{SWS+2}, {WS_BYTES}
    s_mov_b32 s{SWS+3}, 0x00020000
    s_lshl_b32 s{sT0}, s{sG}, 9
    s_add_u32 s{SW}, s44, s{sT0}
    s_addc_u32 s{SW+1}, s45, 0
    s_and_b32 s{SW+1}, s{SW+1}, 0xffff
    s_sub_u32 s{SW+2}, {576*8192}, s{sT0}
    s_mov_b32 s{SW+3}, 0x00020000''')
    for p in range(4):
        k(f's_mov_b32 s{sT0}, {MODP + p*3456*4}')
        k.vm(f'buffer_load_dwordx4 v[{20+8*p}:{23+8*p}], v16, s[{SWS}:{SWS+3}], s{sT0} offen', 'mod')
        k.vm(f'buffer_load_dwordx4 v[{24+8*p}:{27+8*p}], v16, s[{SWS}:{SWS+3}], s{sT0} offen offset:2304', 'mod')
    R = lambda s: (s + 2) % 4
    def wdma(s):
        out = []
        for half in range(2):
            out.append(f's_add_u32 m0, s{sMB}, {R(s)*32768 + half*4096}')
            out.append(f's_mov_b32 s{sWO}, {(s*64 + half*16)*8192}')
            for i in range(4):
                out.append(('vm', f'buffer_load_dwordx4 v{vWV+i}, s[{SW}:{SW+3}], s{sWO} offen offset:{i*1024} lds', f'W{s}'))
        return out
    def xnload(ks):
        out = []
        for tb in range(2):
            if ks % 4 == 0 and ks: out.append(f's_add_u32 s{sXO+tb}, s{sXO+tb}, 4096')
            r = Q + 8*(ks % 8) + 4*tb
            out.append(('vm', f'buffer_load_dwordx4 v[{r}:{r+3}], v{vL16}, s[{SWS}:{SWS+3}], s{sXO+tb} offen offset:{(ks%4)*1024}', f'X{ks}'))
        return out
    NPRE = opt.get('npre', 2)
    for it in wdma(0) + xnload(0) + xnload(1): k.item(it)
    VOFF = 3*8192 + 2048
    k(f'''s_lshl_b32 s{sT0}, s{sG}, 19
    s_add_u32 s{SK}, s40, s{sT0}
    s_addc_u32 s{SK+1}, s41, 0
    s_and_b32 s{SK+1}, s{SK+1}, 0xffff
    s_mov_b32 s{SK+2}, 524288
    s_mov_b32 s{SK+3}, 0x00020000
    s_add_u32 s{SV}, s42, s{sT0}
    s_addc_u32 s{SV+1}, s43, 0
    s_sub_u32 s{SV}, s{SV}, {VOFF}
    s_subb_u32 s{SV+1}, s{SV+1}, 0
    s_and_b32 s{SV+1}, s{SV+1}, 0xffff
    s_mov_b32 s{SV+2}, {524288 + VOFF}
    s_mov_b32 s{SV+3}, 0x00020000
    s_mov_b32 s{sTHR}, {f2u(THR)}
    s_mov_b32 s{sMRG}, {f2u(MARGIN)}''')
    k(f'''v_lshrrev_b32 v17, 4, v0
    v_and_b32 v18, 15, v0
    s_lshl_b32 s{sT0}, s{sW}, 3
    v_add_u32 v19, s{sT0}, v17
    v_lshlrev_b32 v52, 8, v19
    v_and_b32 v19, 15, v19
    v_xor_b32 v19, v19, v18
    v_lshl_add_u32 v19, v19, 4, v52
    v_accvgpr_write_b32 a{aPARK}, v19
    v_xor_b32 v19, 64, v19
    v_accvgpr_write_b32 a{aPARK+1}, v19
    v_lshlrev_b32 v19, 1, v17
    v_xor_b32 v19, v19, v18
    v_lshl_add_u32 v19, v19, 4, v52
    v_accvgpr_write_b32 a{aPARK+2}, v19
    v_xor_b32 v19, 0x80, v19
    v_accvgpr_write_b32 a{aPARK+3}, v19''')
    k(f'''v_lshrrev_b32 v18, 2, v0
    v_and_b32 v19, 7, v18
    v_and_b32 v52, 3, v0
    v_lshlrev_b32 v52, 3, v52
    v_lshl_add_u32 v52, v19, 5, v52
    v_lshl_add_u32 v53, v18, 9, v52
    v_add_u32 v{vWA}, 0x10000, v53''')
    for i in range(1, 8): k(f'v_xor_b32 v{vWA+i}, {32*i}, v{vWA}')
    k(f'''v_lshl_add_u32 v53, v19, 8, v52
    v_lshrrev_b32 v19, 5, v0
    v_lshl_add_u32 v53, v19, 12, v53
    v_add_u32 v53, 0x800, v53
    v_accvgpr_write_b32 a{aPARK+4}, v53
    v_lshlrev_b32 v{vCS}, 6, v17
    v_add_u32 v{vCS}, {TBL}, v{vCS}
    v_and_b32 v52, 1, v17
    v_lshl_or_b32 v52, v52, 1, v19
    v_and_b32 v18, 15, v0
    v_xor_b32 v52, v52, v18
    v_lshlrev_b32 v52, 4, v52
    v_and_b32 v19, 7, v0
    v_lshl_add_u32 v52, v19, 8, v52
    v_bfe_u32 v19, v0, 3, 1
    v_lshl_add_u32 v52, v19, 12, v52
    v_add_u32 v52, 0x10000, v52
    v_accvgpr_write_b32 a{aPARK+5}, v52
    v_and_b32 v19, 3, v0
    v_cmp_eq_u32 vcc, 0, v19
    v_mov_b32 v19, 0x3f803f80
    s_nop 0
    v_cndmask_b32 v19, 0, v19, vcc
    v_accvgpr_write_b32 a{aPARK+6}, v19''')
    for s in range(1, NPRE):
        for it in wdma(s) + xnload(2*s) + xnload(2*s+1): k.item(it)
    SC = 128.0 ** -0.5 * math.log2(math.e)
    k(f's_mov_b32 s{sT0}, {f2u(SC)}')
    k(f'''v_lshrrev_b32 v17, 5, v16
    v_and_b32 v18, 0x10, v16
    v_lshl_add_u32 v17, v17, 6, v18
    v_add_u32 v17, {TBL}, v17''')
    for i in range(128): k(f'v_accvgpr_write_b32 a{i}, 0')
    k.wait(vm=['mod'])
    for i in range(8):
        k(f'v_add_f32 v{20+i}, v{20+i}, v{28+i}')
        k(f'v_add_f32 v{36+i}, v{36+i}, v{44+i}')
    for i in range(8): k(f'v_add_f32 v{20+i}, v{20+i}, v{36+i}')
    for i in range(4): k(f'v_cvt_pk_bf16_f32 v{28+i}, v{20+2*i}, v{21+2*i}')
    for i in range(4):
        k(f'v_lshlrev_b32 v{20+2*i}, 16, v{28+i}')
        k(f'v_and_b32 v{21+2*i}, 0xffff0000, v{28+i}')
    for i in range(4): k(f'v_add_f32 v{24+i}, 1.0, v{24+i}')
    for i in range(2): k(f'v_cvt_pk_bf16_f32 v{28+i}, v{24+2*i}, v{25+2*i}')
    for i in range(2):
        k(f'v_lshlrev_b32 v{24+2*i}, 16, v{28+i}')
        k(f'v_and_b32 v{25+2*i}, 0xffff0000, v{28+i}')
    for i in range(8): k(f'v_mul_f32 v{20+i}, s{sT0}, v{20+i}')
    k.ds('ds_write_b128 v17, v[24:27]')
    k.ds('ds_write_b128 v17, v[20:23] offset:32')
    k.wait(vm=['W0'], lg0=True)
    k('s_barrier')
    stamp()
    def areads(f):
        ks, db = divmod(f, 16); s, kl = divmod(ks, 2)
        a = aRING + 4*(f % 16)
        return [('ds', f'ds_read_b64_tr_b16 a[{a+2*j}:{a+2*j+1}], v{vWA+(db&7)} offset:{kl*16384 + j*8192 + (db>>3)*256 + (R(s)&1)*32768}', f'A{f}') for j in range(2)]
    def csreads(ks):
        b = CSB[ks & 1]
        return [('ds', f'ds_read_b128 v[{b+4*q}:{b+4*q+3}], v{vCS} offset:{ks*256 + q*16}', f'C{ks}') for q in (0, 2, 1, 3)]
    def hcalc(ks):
        b = CSB[ks & 1]; x = Q + 8*(ks % 8); h = HB[ks & 1]
        out = [('wait', dict(vm=[f'X{ks}'], lg=[f'C{ks}']))]
        for i in range(4):
            out.append(f'v_fma_mix_f32 v{vT0}, v{x+i}, v{b+2*i}, v{b+8+2*i} op_sel:[0,0,0] op_sel_hi:[1,0,0]')
            out.append(f'v_fma_mix_f32 v{h+i}, v{x+i}, v{b+2*i+1}, v{b+9+2*i} op_sel:[1,0,0] op_sel_hi:[1,0,0]')
            out.append(f'v_fma_mix_f32 v{b+8+2*i}, v{x+4+i}, v{b+2*i}, v{b+8+2*i} op_sel:[0,0,0] op_sel_hi:[1,0,0]')
            out.append(f'v_cvt_pk_bf16_f32 v{h+i}, v{vT0}, v{h+i}')
            out.append(f'v_fma_mix_f32 v{b+9+2*i}, v{x+4+i}, v{b+2*i+1}, v{b+9+2*i} op_sel:[1,0,0] op_sel_hi:[1,0,0]')
            out.append(f'v_cvt_pk_bf16_f32 v{h+4+i}, v{b+8+2*i}, v{b+9+2*i}')
        return out
    def kvdma(t, vpart=True, vfix=None):
        out = [f's_add_u32 m0, s{sW4K}, {(t % 8)*16384}', f's_mov_b32 s{sKO}, {(t+2)*8192}']
        out.append(('vm', f'buffer_load_dwordx4 v{vKV0}, s[{SK}:{SK+3}], s{sKO} offen lds', f'S{t}'))
        out.append(('vm', f'buffer_load_dwordx4 v{vKV1}, s[{SK}:{SK+3}], s{sKO} offen offset:1024 lds', f'S{t}'))
        if vpart:
            if vfix is not None: out.append(f's_mov_b32 s{sKO}, {vfix}')
            out.append(('vm', f'buffer_load_dwordx4 v{vVV0}, s[{SV}:{SV+3}], s{sKO} offen offset:2048 lds', f'S{t}'))
            out.append(('vm', f'buffer_load_dwordx4 v{vVV1}, s[{SV}:{SV+3}], s{sKO} offen offset:3072 lds', f'S{t}'))
        return out
    def kreads(u, tag):
        return [('ds', f'ds_read_b128 a[{aK+16*kb+4*ks}:{aK+16*kb+4*ks+3}], v{vKA+ks} offset:{u*16384 + kb*8192}', f'{tag}{4*kb+ks}') for kb in range(2) for ks in range(4)]
    LA = opt.get('la', 6)
    PAUSE = 6
    for it in csreads(0) + csreads(1): k.item(it)
    for f in range(LA):
        for it in areads(f): k.item(it)
    for it in hcalc(0): k.item(it)
    k.wait(lg=['A0', 'A1'])
    k('s_nop 0')
    N = 576
    gaps = [[] for _ in range(N)]
    def place_vm(items, g, step):
        pend = []
        for it in items:
            if isinstance(it, str): pend.append(it); continue
            while gload(gaps[g]) > 0: g += 1
            for i, sc in enumerate(reversed(pend)): gaps[g - i].insert(0, sc)
            pend = []
            gaps[g].append(it); g += step
        return g
    early = []
    for s in range(NPRE, 4): early += wdma(s) + xnload(2*s) + xnload(2*s+1)
    if early: place_vm(early, 2, max(1, 48 // sum(1 for x in early if not isinstance(x, str))))
    for s in range(9):
        nb = 64*(s+1) - 2*LA
        if s <= 4: dm = wdma(s+4) + xnload(2*s+8) + xnload(2*s+9)
        elif s == 5: dm = kvdma(-2, vpart=False) + kvdma(-1, vpart=False)
        elif s == 6: dm = kvdma(0, vfix=3*8192) + kvdma(1)
        elif s == 7: dm = kvdma(2) + kvdma(3)
        else: dm = []
        place_vm(dm, nb + 2, 5)
        nxt = [f'W{s+1}'] if s < 8 else ['S-2', 'S-1']
        gaps[nb-2].append(('wait', dict(vm=nxt, lg0=True)))
        gaps[nb-1].append('s_barrier')
        if s in (1, 3, 5, 7):
            for i in range(8): gaps[nb - 5 + i//2].append(f'v_xor_b32 v{vWA+i}, 0x10000, v{vWA+i}')
        if s == 5:
            for i in range(4): gaps[nb - 7 + i//2].append(f'v_accvgpr_read_b32 v{vKV0+i}, a{aPARK+i}')
    for s in range(9):
        b = 64*s - 2*LA
        rd = []
        for f in range(32*s, 32*s+32):
            if f >= LA: rd += areads(f)
            if f % 16 == LA + 1 and f//16 + 2 < 18: rd += csreads(f//16 + 2)
        pour(gaps, rd, max(b, 0), b + 63 - PAUSE, cap=2)
    for ks in range(18):
        g = 32*ks
        if ks + 1 < 18: pour(gaps, hcalc(ks+1), g, g + 29, cap=2)
    for f in range(2, 288, 2):
        gaps[2*f - 1].append(('wait', dict(lg=[f'A{f}', f'A{f+1}'])))
    def qcvt(qb, tb, ks):
        q = Q + 16*(2*qb + tb) + 4*ks
        o = []
        for y in range(2):
            a = ACC + 4*((8*qb + 2*ks + y)*2 + tb)
            o += [f'v_cvt_pk_bf16_f32 v{q+2*y+i}, v{a+2*i}, v{a+2*i+1}' for i in range(2)]
        return o, [f'v_permlane16_swap_b32 v{q+i}, v{q+2+i}' for i in range(2)]
    def qhead(qb):
        o = []; pend = []
        for ks in range(4):
            for tb in range(2):
                c, sw = qcvt(qb, tb, ks)
                o += c + pend; pend = sw
        return o + ['v_nop', 'v_nop'] + pend
    g = 544
    nb = 576 - 2*LA
    pour(gaps, [f'v_accvgpr_read_b32 v{vKA}, a{aPARK+5}'] + [f'v_xor_b32 v{vKA+i}, {i*64}, v{vKA}' for i in range(1, 4)], g, g + 6)
    pour(gaps, kreads(2, 'K0_'), nb, nb + 7)
    h0 = qhead(0)
    pour(gaps, h0[:36], g + 8, 575, cap=2)
    if opt.get('verbose'):
        for ks in (0, 1, 2, 3, 8, 9, 16, 17): print('ks', ks, ''.join(str(gload(x)) for x in gaps[32*ks:32*ks+32]))
    mfs = []
    for n in range(N):
        f, tb = divmod(n, 2); ks, db = divmod(f, 16)
        if db & 1: tb ^= 1
        a = aRING + 4*(f % 16); d = ACC + 4*(2*db + tb); h = HB[ks & 1] + 4*tb
        mfs.append(f'{MF} v[{d}:{d+3}], a[{a}:{a+3}], v[{h}:{h+3}], ' + (f'v[{d}:{d+3}]' if ks else '0'))
    emit(mfs, gaps)
    stamp()
    def qk(cb, kb, ks, dst, c):
        d = dst + 8*cb + 4*kb; q = Q + 16*cb + 4*ks; a = aK + 16*kb + 4*ks
        return f'{MF} v[{d}:{d+3}], a[{a}:{a+3}], v[{q}:{q+3}], ' + (f'v[{d}:{d+3}]' if ks else c)
    def rowmax(src, m, t):
        o = [f'v_max3_f32 v{m}, v{src}, v{src+1}, v{src+2}', f'v_max3_f32 v{m}, v{m}, v{src+3}, v{src+4}',
             f'v_max3_f32 v{m}, v{m}, v{src+5}, v{src+6}', f'v_max_f32 v{m}, v{m}, v{src+7}']
        for sw in ('32', '16'):
            o += [f'v_mov_b32 v{t}, v{m}', 'v_nop', 'v_nop', f'v_permlane{sw}_swap_b32 v{m}, v{t}', f'v_max_f32 v{m}, v{m}, v{t}']
        return o
    def initnm(cbs):
        per = []
        for n, cb in enumerate(cbs):
            src = S[0] + 8*cb; nm = NM + 4*cb; m = vMX + 2*n
            o = [x for x in rowmax(src, m, m+1)]
            o.append(f'v_add_f32 v{m}, s{sMRG}, v{m}')
            o += [f'v_sub_f32 v{nm+i}, 0, v{m}' for i in range(4)]
            o += [f'v_sub_f32 v{src+i}, v{src+i}, v{m}' for i in range(8)]
            per.append(o)
        out = []; skip = False
        for a, b in zip(*per):
            if a == 'v_nop':
                if not skip: out.append(a)
                skip = True; continue
            skip = False
            out += [a, b]
        return out
    for it in h0[36:]: k(it)
    k.wait(lg0=True)
    k('s_nop 0')
    mfs = [qk(cb, kb, ks, S[0], '0') for cb in range(4) for kb in range(2) for ks in range(4)]
    gaps = [[] for _ in range(32)]
    pour(gaps, qhead(1), 0, 14)
    kr = kreads(3, 'K1_')
    for i in range(8): gaps[24 + i].append(kr[i])
    misc = [f'v_accvgpr_read_b32 v{vVA}, a{aPARK+4}', f'v_accvgpr_read_b32 v{vT0}, a{aPARK+6}']
    misc += [f'v_xor_b32 v{vVA+i}, {i*32}, v{vVA}' for i in range(1, 8)]
    misc += [f'v_accvgpr_write_b32 a{aONE+i}, v{vT0}' for i in range(4)]
    pour(gaps, misc + initnm((0, 1)), 15, 31)
    emit(mfs, gaps)
    dm = kvdma(4) + kvdma(5)
    zero = [f'v_mov_b32 v{P[1]+i}, 0' for i in range(16)] + [f'v_mov_b32 v{L[1]+i}, 0' for i in range(16)]
    for it in dm:
        k.item(it)
        if not isinstance(it, str):
            for z in zero[:4]: k(z)
            zero = zero[4:]
    for it in initnm((2, 3)): k(it)
    k(f's_mov_b32 s{sKO}, {7*8192}')
    k(f's_add_u32 s{sMB}, s{sW4K}, 0x10000')
    for i in range(4): k(f'v_xor_b32 v{vKA+i}, 0x10000, v{vKA+i}')
    k.wait(vm=['S1'], lg0=True)
    k('s_barrier')
    stamp()
    def vreads(u):
        return [('ds', f'ds_read_b64_tr_b16 a[{aV+4*db+2*j}:{aV+4*db+2*j+1}], v{vVA+db} offset:{u*16384 + j*8192}', f'V{db}') for db in range(8) for j in range(2)]
    def pv(db, cb, p):
        a = aV + 4*db; d = 16*db + 4*cb; b = P[p] + 4*cb
        return f'{MF} a[{d}:{d+3}], a[{a}:{a+3}], v[{b}:{b+3}], a[{d}:{d+3}]'
    def lsum(cb, p):
        return f'{MF} v[{L[p]+4*cb}:{L[p]+4*cb+3}], a[{aONE}:{aONE+3}], v[{P[p]+4*cb}:{P[p]+4*cb+3}], v[{L[p^1]+4*cb}:{L[p^1]+4*cb+3}]'
    if opt.get('align'): k('.p2align 3' if opt['align'] == 1 else f'.p2align {opt["align"]}')
    k(f'LOOP_{name}:')
    extras = opt.get('extras', {1: 'd', 2: 'm', 3: 'd', 5: 'd', 6: 'm', 7: 'd', 10: 'm', 14: 'm'})
    tailm = opt.get('tailm', [])
    for u in range(4):
        p = u & 1
        k.lq = []; k.vq = []
        ds = vreads(u) + kreads(u, 'K')
        dms = [('vm', f'buffer_load_dwordx4 v{vKV0}, s[{SK}:{SK+3}], s{sKO} offen lds', None),
               ('vm', f'buffer_load_dwordx4 v{vKV1}, s[{SK}:{SK+3}], s{sKO} offen offset:1024 lds', None),
               ('vm', f'buffer_load_dwordx4 v{vVV0}, s[{SV}:{SV+3}], s{sKO} offen offset:2048 lds', None),
               ('vm', f'buffer_load_dwordx4 v{vVV1}, s[{SV}:{SV+3}], s{sKO} offen offset:3072 lds', None)]
        gaps = [[] for _ in range(68)]
        g = 0; lpos = []; dmg = []; kpos = []
        for i in range(16):
            for x in extras.get(i, ''):
                if x == 'd': gaps[g] += ds[:2]; ds = ds[2:]
                elif x == 'm': gaps[g].append(dms.pop(0)); dmg.append(g)
                g += 1
            a = vE + 2*(i % 2); src = S[p] + 2*i
            gaps[g].append(f'v_exp_f32 v{a}, v{src}')
            gaps[g+1].append(f'v_exp_f32 v{a+1}, v{src+1}')
            if len(ds) <= 8: kpos.append(g+2)
            gaps[g+2] += [ds.pop(0), f'v_cvt_pk_bf16_f32 v{P[p]+i}, v{a}, v{a+1}']
            g += 3
            if i % 4 == 3: lpos.append(g + 1)
        for gg in tailm: gaps[gg].append(dms.pop(0)); dmg.append(gg)
        assert not ds and not dms
        mf = [qk(cb, kb, ks, S[p^1], f'v[{NM+4*cb}:{NM+4*cb+3}]') for cb in range(4) for kb in range(2) for ks in range(4)]
        mf += [pv(db, cb if db % 2 == 0 else 3 - cb, p^1) for db in range(8) for cb in range(4)]
        for cb, lp in enumerate(lpos): mf.insert(lp, lsum(cb, p))
        for i in range(8):
            last = max(n for n, m in enumerate(mf) if f', a[{aK+4*i}:{aK+4*i+3}],' in m)
            assert kpos[i] >= last, (i, kpos[i], last)
        pvs = [n for n, m in enumerate(mf) if m.startswith(f'{MF} a[')]
        gaps[pvs[0]-1].append(('wait', dict(lg=['V0', 'V1', 'V2', 'V3'])))
        gaps[pvs[16]-1].append(('wait', dict(lg=['V4', 'V5', 'V6', 'V7'])))
        if u == 2: gaps[dmg[0]-3].append(f's_xor_b32 s{sMB}, s{sMB}, 0x10000')
        gaps[dmg[0]-2].append(f's_add_u32 m0, s{sMB}, {((u+2)&3)*16384}')
        gaps[dmg[0]-1].append(f's_add_u32 s{sKO}, s{sKO}, 8192')
        e = lpos[3]
        gaps[g].append(f'v_max3_f32 v{vMX}, v{L[p]}, v{L[p]+4}, v{L[p]+8}')
        cg = opt.get('chk', 65)
        gaps[cg] += [f'v_max_f32 v{vMX}, v{vMX}, v{L[p]+12}', f'v_cmp_lt_f32 vcc, s{sTHR}, v{vMX}']
        if u == 3:
            tog = [f'v_xor_b32 v{vVA+i}, 0x10000, v{vVA+i}' for i in range(8)] + [f'v_xor_b32 v{vKA+i}, 0x10000, v{vKA+i}' for i in range(4)]
            pour(gaps, tog, g + 1, 66)
            gaps[66].append(f's_cmp_lt_u32 s{sKO}, {(64+7)*8192}')
        bg = opt.get('bar', 63)
        nb4 = sum(1 for x in dmg if x < bg - 1)
        gaps[bg-1].append(f's_waitcnt vmcnt({12+nb4}) lgkmcnt(0)' if p else 's_waitcnt lgkmcnt(0)')
        if p: gaps[bg].append('s_barrier')
        gaps[67] += [f's_cbranch_vccnz SLOW{u}_{name}', f'BACK{u}_{name}:']
        if u == 3: gaps[67].append(f's_cbranch_scc1 LOOP_{name}')
        if opt.get('verbose'): print('period', u, ''.join(str(gload(x)) for x in gaps), lpos)
        emit(mf, gaps)
    stamp()
    k.lq = []; k.vq = []
    for it in vreads(0): k.item(it)
    for cb in range(4): k(f'v_rcp_f32 v{vE+cb}, v{L[1]+4*cb}')
    k(f'''s_lshl_b32 s{sOO}, s{sRB}, 2
    s_add_u32 s{sOO}, s{sOO}, s{sW}
    s_lshl_b32 s{sOO}, s{sOO}, 18
    s_lshl_b32 s{sT0}, s{sG}, 13
    s_add_u32 s{sOO}, s{sOO}, s{sT0}
    s_add_u32 s{sOO}, s{sOO}, {OBUF}
    s_add_u32 s{sOO+1}, s{sOO}, 0x20000
    s_add_u32 s{sOO+2}, s{sOO}, 0x1000
    s_add_u32 s{sOO+3}, s{sOO}, 0x21000''')
    cnt = [0]
    def oepi(D, cb):
        o = []
        t = 16 + 12*(cnt[0] % 5); cnt[0] += 1
        for i in range(8): o.append(f'v_accvgpr_read_b32 v{t+i}, a{16*(2*D + i//4) + 4*cb + i%4}')
        for i in range(8): o.append(f'v_mul_f32 v{t+i}, v{t+i}, v{vE+cb}')
        for i in range(4): o.append(f'v_cvt_pk_bf16_f32 v{t+8+i}, v{t+2*i}, v{t+2*i+1}')
        o.append(f'buffer_store_dwordx4 v[{t+8}:{t+11}], v{vL16}, s[{SWS}:{SWS+3}], s{sOO+cb} offen offset:{D*1024}')
        return o
    st = []
    for D in range(4):
        for cb in range(4): st += oepi(D, cb)
    pos = 0
    for db in range(8):
        k.wait(lg=[f'V{db}'])
        for cb in range(4):
            k(pv(db, cb, 1))
            if db >= 3:
                for it in st[pos:pos+2]: k(it)
                pos += 2
    for it in st[pos:]: k(it)
    stamp()
    if stamps:
        k('s_waitcnt vmcnt(0)')
        stamp()
        k('s_memrealtime s[92:93]')
        k('s_waitcnt lgkmcnt(0)')
        k(f's_sub_u32 s{60+2*nst[0]}, s92, s90'); nst[0] += 1
        k(f's_lshl_b32 s{sT0}, s2, 2')
        k(f's_add_u32 s{sT0}, s{sT0}, s{sW}')
        k(f's_lshl_b32 s{sT0}, s{sT0}, 5')
        k(f's_add_u32 s{sT0}, s{sT0}, {STAMP}')
        k('v_mov_b32 v2, 0')
        for i in range(nst[0]):
            k(f'v_mov_b32 v1, s{60+2*i}')
            k(f'buffer_store_dword v1, v2, s[{SWS}:{SWS+3}], s{sT0} offen offset:{4*i}')
    k(f'END_{name}:')
    k('s_endpgm')
    for u in range(4):
        k(f'SLOW{u}_{name}:')
        k(f's_call_b64 s[{sRET}:{sRET+1}], FIX{u&1}_{name}')
        k(f's_branch BACK{u}_{name}')
    for p in range(2):
        k(f'FIX{p}_{name}:')
        k('s_nop 7')
        for cb in range(4):
            src = S[p] + 8*cb; nx = S[p^1] + 8*cb; nm = NM + 4*cb; lo = L[p^1] + 4*cb
            k(f'v_log_f32 v{vMX+2}, v{lo}')
            for it in rowmax(src, vMX, vMX+1): k(it)
            k(f'v_max_f32 v{vMX}, v{vMX}, v{vMX+2}')
            k(f'v_add_f32 v{vMX}, s{sMRG}, v{vMX}')
            k(f'v_max_f32 v{vMX}, 0, v{vMX}')
            k(f'v_exp_f32 v{vMX+1}, -v{vMX}')
            for i in range(4): k(f'v_sub_f32 v{nm+i}, v{nm+i}, v{vMX}')
            for i in range(8):
                k(f'v_sub_f32 v{src+i}, v{src+i}, v{vMX}')
                k(f'v_sub_f32 v{nx+i}, v{nx+i}, v{vMX}')
            k(f'v_mul_f32 v{lo}, v{lo}, v{vMX+1}')
            for db in range(8):
                for i in range(4):
                    k(f'v_accvgpr_read_b32 v{vE}, a{16*db+4*cb+i}')
                    k(f'v_mul_f32 v{vE}, v{vE}, v{vMX+1}')
                    k(f'v_accvgpr_write_b32 a{16*db+4*cb+i}, v{vE}')
            for i in range(4):
                k(f'v_exp_f32 v{vE}, v{src+2*i}')
                k(f'v_exp_f32 v{vE+1}, v{src+2*i+1}')
                k('s_nop 0')
                k(f'v_cvt_pk_bf16_f32 v{P[p]+4*cb+i}, v{vE}, v{vE+1}')
            k('s_nop 1')
            k(lsum(cb, p))
        k('s_nop 7')
        k(f's_setpc_b64 s[{sRET}:{sRET+1}]')
    return k

if __name__ == '__main__':
    import sys, chk
    k = build(stamps=True, opt=dict(verbose=True))
    t = assemble_file([k])
    open('k2.s', 'w').write(t)
    e = chk.check(t) + chk.check_waits(t, k.name) + chk.check_waits(t, k.name, forced=[f'SLOW{u}_{k.name}' for u in range(4)])
    print('\n'.join(e[:40])); print(len(e), 'problems')
```

```python
import math, struct
from asmlib import *
from layout import *
def f2u(x): return struct.unpack('<I', struct.pack('<f', x))[0]
MF = 'v_mfma_f32_16x16x32_bf16'
SWT, SWS, SCS = 8, 12, 16
sW, sT0, sT1, sBO, sAO, sM0, sODD, sHP, sHS, sSL, sTK = 24, 25, 26, 27, 28, 29, 30, 31, 32, 33, 34
vD, vR, vE, vL16, vCS, vAB, vK = 1, 10, 12, 14, 18, 20, 28
ST = 28
VACC = 64
aX, aA, aB, aC = 96, 116, 164, 228
NA = 12
STG = 36864
XCH = 4*STG
def acc(f, m, tb):
    if f < 6: return 'v', VACC + ((f*2 + m)*4 + tb)*4
    return 'a', (((f-6)*2 + m)*4 + tb)*4
def build(name='k4_kernel', stamps=False, opt=None):
    opt = opt or {}
    k = E(name, 256, 256, lds=XCH + 4096, vgpr=256, agpr=256)
    nst = [0]
    def stamp():
        if stamps:
            k(f's_memtime s[{60 + 2*nst[0]}:{61 + 2*nst[0]}]'); nst[0] += 1
    k(f's_cmp_ge_u32 s2, 256')
    k(f's_cbranch_scc1 END_{name}')
    stamp()
    if stamps: k('s_memrealtime s[90:91]')
    k(f'''s_load_dwordx4 s[40:43], s[0:1], 48
    s_load_dwordx2 s[44:45], s[0:1], 104
    v_lshrrev_b32 v19, 6, v0
    s_and_b32 s{sT0}, s2, 7
    v_readfirstlane_b32 s{sW}, v19
    s_lshl_b32 s{sSL}, s{sT0}, 2
    s_bfe_u32 s{sT0}, s2, 0x20003
    s_add_u32 s{sSL}, s{sSL}, s{sT0}
    s_lshr_b32 s{sTK}, s2, 5
    s_lshl_b32 s{sTK}, s{sTK}, 2
    s_add_u32 s{sTK}, s{sTK}, s{sW}
    s_and_b32 s{sODD}, s{sSL}, 1
    s_lshl_b32 s{sT1}, s{sODD}, 1
    v_and_b32 v0, 63, v0
    v_lshlrev_b32 v{vL16}, 4, v0''')
    for i in range(9):
        t = 28 + 4*(i % 3)
        k(f'''v_add_u32 v{t}, {64*i}, v0
        v_mul_u32_u24 v{t+1}, 3641, v{t}
        v_lshrrev_b32 v{t+1}, 16, v{t+1}
        v_mul_u32_u24 v{t+2}, 18, v{t+1}
        v_sub_u32 v{t}, v{t}, v{t+2}
        v_add_u32 v{t}, s{sT1}, v{t}
        v_subrev_u32 v{t+2}, 18, v{t}
        v_min_u32 v{t}, v{t}, v{t+2}
        v_and_b32 v{t+2}, 12, v{t+1}
        v_and_b32 v{t+3}, 3, v{t+1}
        v_lshl_add_u32 v{t+3}, v{t+2}, 1, v{t+3}
        v_lshrrev_b32 v{t+1}, 4, v{t+1}
        v_lshl_add_u32 v{t+3}, v{t+1}, 2, v{t+3}
        v_mul_u32_u24 v{t+3}, 9216, v{t+3}
        v_lshl_add_u32 v{vD+i}, v{t}, 4, v{t+3}''')
        if i % 4: k(f'v_subrev_u32 v{vD+i}, {(i%4)*1024}, v{vD+i}')
    for tb in range(1, 4): k(f'v_add_u32 v{vL16+tb}, {tb*18432}, v{vL16}')
    k(f'''s_mul_i32 s{sM0}, s{sW}, 9216
    s_lshr_b32 s{sT0}, s{sW}, 1
    s_mul_i32 s{sAO}, s{sT0}, {32*9216}
    s_mul_i32 s{sT0}, s{sSL}, 288
    s_add_u32 s{sAO}, s{sAO}, s{sT0}
    s_mul_i32 s{sBO}, s{sTK}, {4*18432}
    s_add_u32 s{sBO}, s{sBO}, {YB}
    s_bitcmp1_b32 s{sW}, 0
    s_waitcnt lgkmcnt(0)
    s_cselect_b32 s{SWT}, s42, s40
    s_cselect_b32 s{SWT+1}, s43, s41
    s_and_b32 s{SWT+1}, s{SWT+1}, 0xffff
    s_mov_b32 s{SWT+2}, {576*9216}
    s_mov_b32 s{SWT+3}, 0x00020000''')
    srd(k, SWS, 44, WS_BYTES)
    def wdma(s):
        o = []
        if s: o.append(f's_add_u32 s{sAO}, s{sAO}, {64*9216}')
        for i in range(9):
            if i % 4 == 0: o.append(f's_add_u32 m0, s{sM0}, {(s % 4)*STG + i*1024}')
            if i % 4 == 0 and s < opt.get('npre', 2): o.append('s_nop 0')
            o.append(('vm', f'buffer_load_dwordx4 v{vD+i}, s[{SWT}:{SWT+3}], s{sAO} offen offset:{(i%4)*1024} lds', f'W{s}'))
        return o
    def bload(ks):
        o = []
        if ks and ks % 4 == 0: o.append(f's_add_u32 s{sBO}, s{sBO}, 4096')
        for tb in range(4):
            b = aB + 16*(ks % 4) + 4*tb
            o.append(('vm', f'buffer_load_dwordx4 a[{b}:{b+3}], v{vL16+tb}, s[{SWS}:{SWS+3}], s{sBO} offen offset:{(ks%4)*1024}', f'B{ks}'))
        c = aC + 4*(ks % 4)
        o.append(('vm', f'buffer_load_dwordx4 a[{c}:{c+3}], v{vCS}, s[{SCS}:{SCS+3}], 0 offen offset:{ks*64}', f'B{ks}'))
        return o
    for it in wdma(0): k.item(it)
    k(f'''s_add_u32 s{SCS}, s44, {CSV}
    s_addc_u32 s{SCS+1}, s45, 0
    s_and_b32 s{SCS+1}, s{SCS+1}, 0xffff
    s_mov_b32 s{SCS+2}, 2304
    s_mov_b32 s{SCS+3}, 0x00020000
    v_and_b32 v28, 15, v0
    v_lshrrev_b32 v29, 4, v0
    v_mul_u32_u24 v{vCS}, 1152, v28
    v_lshl_add_u32 v{vCS}, v29, 4, v{vCS}''')
    for it in bload(0) + bload(1): k.item(it)
    k(f'''v_lshrrev_b32 v28, 2, v0
    v_and_b32 v29, 3, v0
    v_mul_u32_u24 v28, 288, v28
    v_lshl_add_u32 v{vR}, v29, 3, v28
    v_add_u32 v{vR+1}, {STG}, v{vR}
    s_lshr_b32 s{sT0}, s{sW}, 1
    s_mul_i32 s{sT0}, s{sT0}, 9216
    s_and_b32 s{sT1}, s{sW}, 1
    s_mul_i32 s{sT1}, s{sT1}, 160
    s_add_u32 s{sT0}, s{sT0}, s{sT1}
    v_add_u32 v{vE}, s{sT0}, v{vR}
    v_add_u32 v{vE+1}, s{sT0}, v{vR+1}
    s_lshr_b32 s{sT0}, s{sSL}, 1
    s_mul_i32 s{sT0}, s{sT0}, 9216
    s_mul_i32 s{sHP}, s{sTK}, {4*147456}
    s_add_u32 s{sHP}, s{sHP}, s{sT0}
    s_add_u32 s{sHP}, s{sHP}, {HH}
    s_lshl_b32 s{sT0}, s{sODD}, 3
    s_add_u32 s{sHS}, s{sHP}, s{sT0}
    s_add_u32 s{sHS}, s{sHS}, 4096
    s_mul_i32 s{sT0}, s{sODD}, 5120
    s_add_u32 s{sHP}, s{sHP}, s{sT0}
    s_lshl_b32 s{sSL}, s{sTK}, 10
    s_add_u32 s{sSL}, s{sSL}, {STAT}''')
    NPRE = opt.get('npre', 2)
    for s in range(1, NPRE):
        for it in wdma(s): k.item(it)
    fr = []
    for ks in range(18):
        x = 0
        for n in range(18):
            fr.append((ks, 'n', n % 2, n // 2))
            if n in (2, 6, 9, 13, 16): fr.append((ks, 'x', 0, x)); x += 1
    first = []; mfs = []
    for n, (ks, kind, m, f) in enumerate(fr):
        first.append(len(mfs)); a = aA + 4*(n % NA)
        if kind == 'n':
            for t in range(4):
                tb = t if n % 2 == 0 else 3 - t
                c, d = acc(f, m, tb); b = aB + 16*(ks % 4) + 4*tb
                mfs.append(f'{MF} {c}[{d}:{d+3}], a[{a}:{a+3}], a[{b}:{b+3}], ' + (f'{c}[{d}:{d+3}]' if ks else '0'))
        else:
            d = aX + 4*f; b = aC + 4*(ks % 4)
            mfs.append(f'{MF} a[{d}:{d+3}], a[{a}:{a+3}], a[{b}:{b+3}], ' + (f'a[{d}:{d+3}]' if ks else '0'))
    N = len(mfs); first.append(N)
    def areads(n):
        ks, kind, m, f = fr[n]; s, kl = divmod(ks, 2); a = aA + 4*(n % NA)
        return [('ds', f'ds_read_b64_tr_b16 a[{a+2*j}:{a+2*j+1}], v{(vR if kind == "n" else vE) + (s & 1)} offset:{kl*18432 + m*9216 + j*4608 + f*32}', f'A{n}') for j in range(2)]
    LA = opt.get('la', 5); PAUSE = 6
    k.wait(vm=['W0'])
    k('s_barrier')
    stamp()
    for n in range(LA):
        for it in areads(n): k.item(it)
    k.wait(vm=['B0'], lg=['A0'])
    gaps = [[] for _ in range(N)]
    def place_vm(items, g, step):
        pend = []
        for it in items:
            if isinstance(it, str): pend.append(it); continue
            while gload(gaps[g]) > 0 or any(gaps[g - 1 - i] and klass(gaps[g-1-i][0]) == 0 for i in range(len(pend))): g += 1
            for i, sc in enumerate(reversed(pend)): gaps[g - 1 - i].insert(0, sc)
            pend = []
            gaps[g].append(it); g += step
        return g
    stl = []
    for cb in range(9):
        stl.append(('vm', f'buffer_load_dwordx4 v[{ST+4*cb}:{ST+4*cb+3}], v{vL16}, s[{SWS}:{SWS+3}], s{sSL} offen', 'ST'))
        if cb < 8: stl.append(f's_add_u32 s{sSL}, s{sSL}, 32768')
    nbar = [first[46*(s+1) - LA] for s in range(9)]
    ev = [(3, bload(2))]
    g0 = 20
    for s in range(NPRE, 4): ev.append((g0, wdma(s))); g0 += 40
    for ks in range(0, 15): ev.append((77*ks + (60 if ks == 0 else 3), bload(ks + 3)))
    for s in range(5): ev.append((nbar[s] + 40, wdma(s + 4)))
    ev.append((77*3 + 30, stl))
    ev.sort(key=lambda e: e[0])
    g = 0
    for p, items in ev: g = place_vm(items, max(g, p), 3)
    for s in range(8):
        nb = nbar[s]
        gaps[nb-2].append(('wait', dict(vm=[f'W{s+1}'], lg0=True)))
        gaps[nb-1].append('s_barrier')
        op = 'v_add_u32' if s % 4 < 2 else 'v_subrev_u32'
        gaps[nb-4] += [f'{op} v{vR+(s&1)}, {2*STG}, v{vR+(s&1)}', f'{op} v{vE+(s&1)}, {2*STG}, v{vE+(s&1)}']
    for s in range(9):
        rd = []
        for n in range(46*s, 46*s + 46):
            if n >= LA: rd += areads(n)
        pour(gaps, rd, nbar[s-1] if s else 0, nbar[s] - PAUSE, cap=2)
    for g, items in enumerate(gaps):
        for it in items:
            if not isinstance(it, str) and it[0] == 'ds':
                n = int(it[2][1:])
                assert n < NA or g >= first[n - NA + 1] - 1, (n, g)
                assert g <= first[n] - 6, (n, g, first[n])
    sc = [('wait', dict(vm=['ST']))]
    for i in range(1, 18):
        sc += [f'v_add_f32 v{ST}, v{ST}, v{ST+2*i}', f'v_add_f32 v{ST+1}, v{ST+1}, v{ST+2*i+1}']
    sc += [f'v_mul_f32 v{ST}, {f2u(1/576)}, v{ST}', f'v_mul_f32 v{ST+1}, {f2u(1/576)}, v{ST+1}',
           f'v_fma_f32 v{ST+1}, -v{ST}, v{ST}, v{ST+1}', f'v_max_f32 v{ST+1}, 0, v{ST+1}',
           f'v_add_f32 v{ST+1}, {f2u(1e-5)}, v{ST+1}', f'v_rsq_f32 v{ST+1}, v{ST+1}',
           f'v_and_b32 v{ST+2}, 15, v0', f'v_lshlrev_b32 v{ST+2}, 2, v{ST+2}',
           f'v_mul_f32 v{ST}, -v{ST}, v{ST+1}']
    pour(gaps, sc, 77*8, 77*9 + 40, cap=2)
    bp = []
    for tb in range(4):
        bp.append(('ds', f'ds_bpermute_b32 v{vAB+2*tb}, v{ST+2}, v{ST+1} offset:{64*tb}', 'AB'))
        bp.append(('ds', f'ds_bpermute_b32 v{vAB+2*tb+1}, v{ST+2}, v{ST} offset:{64*tb}', 'AB'))
    pour(gaps, bp, 77*10 + 5, 77*10 + 60, cap=2)
    vH, vXW, vXR = 1, 5, 6
    K1 = -2*math.sqrt(2/math.pi)*math.log2(math.e)
    ea = [f'v_add_u32 v{vH+tb}, {tb*147456}, v{vL16}' for tb in range(4)]
    ea += [f's_mul_i32 s{sT0}, s{sW}, 640', f'v_lshrrev_b32 v{vXR}, 4, v0', f'v_lshlrev_b32 v{vXR}, 4, v{vXR}', f'v_add_u32 v{vXR}, {XCH}, v{vXR}',
           f'v_and_b32 v{vXW}, 15, v0', f'v_cmp_gt_u32 vcc, 2, v{vXW}', f'v_lshl_add_u32 v{vXW}, v{vXW}, 6, v{vXR}', f'v_add_u32 v{vXW}, s{sT0}, v{vXW}',
           f'v_mov_b32 v{vK}, {f2u(K1)}', f'v_mov_b32 v{vK+1}, {f2u(K1*0.044715)}']
    pour(gaps, ea, 77*14 + 5, 77*14 + 60, cap=2)
    for n in range(1, len(fr)):
        w = dict(lg=[f'A{n}'])
        if fr[n][0] != fr[n-1][0]: w['vm'] = [f'B{fr[n][0]}']
        gaps[first[n] - 1].append(('wait', w))
    if opt.get('verbose'):
        for ks in (0, 1, 2, 3, 8, 9, 16, 17): print('ks', ks, ''.join(str(gload(x)) for x in gaps[77*ks:77*ks+77]))
    for m, g in zip(mfs, gaps):
        k(m)
        for it in gsort(g): k.item(it)
    stamp()
    k('s_and_saveexec_b64 s[36:37], vcc')
    k('s_nop 1')
    for x in range(5): k.ds(f'ds_write_b128 v{vXW}, a[{aX+4*x}:{aX+4*x+3}] offset:{128*x}')
    k('s_mov_b64 exec, s[36:37]')
    k.wait(lg0=True)
    k('s_barrier')
    CW = [32, 48]
    def cwreads(f):
        for q in range(4): k.ds(f'ds_read_b128 v[{CW[f&1]+4*q}:{CW[f&1]+4*q+3}], v{vXR} offset:{((q>>1)*10 + f)*128 + (q&1)*64}', f'C{f}')
    pk = lambda r: f'v[{r}:{r+1}]'
    cwreads(0)
    for f in range(9):
        if f < 8: cwreads(f + 1)
        k.wait(lg=[f'C{f}'])
        cw = CW[f & 1]
        for tb in range(4):
            ab = pk(vAB + 2*tb)
            fv = f if f < 6 else f - 6
            g = acc(fv, 0, tb)[1]; u = acc(fv, 1, tb)[1]
            if f >= 6:
                for i in range(4):
                    k(f'v_accvgpr_read_b32 v{g+i}, a{acc(f, 0, tb)[1]+i}')
                    k(f'v_accvgpr_read_b32 v{u+i}, a{acc(f, 1, tb)[1]+i}')
            T = [8, 10]; U = [12, 16]
            for h in range(2): k(f'v_pk_fma_f32 {pk(T[h])}, {pk(cw+2*h)}, {ab}, {pk(cw+4+2*h)} op_sel:[0,1,0] op_sel_hi:[1,1,1]')
            for h in range(2): k(f'v_pk_fma_f32 {pk(U[h])}, {pk(cw+8+2*h)}, {ab}, {pk(cw+12+2*h)} op_sel:[0,1,0] op_sel_hi:[1,1,1]')
            for h in range(2): k(f'v_pk_fma_f32 {pk(g+2*h)}, {pk(g+2*h)}, {ab}, {pk(T[h])} op_sel_hi:[1,0,1]')
            for h in range(2): k(f'v_pk_fma_f32 {pk(u+2*h)}, {pk(u+2*h)}, {ab}, {pk(U[h])} op_sel_hi:[1,0,1]')
            for h in range(2): k(f'v_pk_mul_f32 {pk(T[h])}, {pk(g+2*h)}, {pk(g+2*h)}')
            for h in range(2): k(f'v_pk_fma_f32 {pk(T[h])}, {pk(T[h])}, {pk(vK)}, {pk(vK)} op_sel:[0,1,0] op_sel_hi:[1,1,0]')
            for h in range(2): k(f'v_pk_mul_f32 {pk(T[h])}, {pk(T[h])}, {pk(g+2*h)}')
            for i in range(4): k(f'v_exp_f32 v{8+i}, v{8+i}')
            for h in range(2): k(f'v_pk_mul_f32 {pk(U[h])}, {pk(u+2*h)}, {pk(g+2*h)}')
            for h in range(2): k(f'v_pk_add_f32 {pk(T[h])}, {pk(T[h])}, 1.0 op_sel_hi:[1,0]')
            for i in range(4): k(f'v_rcp_f32 v{8+i}, v{8+i}')
            for h in range(2): k(f'v_pk_mul_f32 {pk(U[h])}, {pk(U[h])}, {pk(T[h])}')
            o = acc(fv & ~1, 0, tb)[1]
            for h in range(2): k(f'v_cvt_pk_bf16_f32 v{o+2*(f&1)+h}, v{U[h]}, v{U[h]+1}')
            if f & 1: k(f'buffer_store_dwordx4 v[{o}:{o+3}], v{vH+tb}, s[{SWS}:{SWS+3}], s{sHP} offen offset:{(f>>1)*1024} {opt.get("st", "")}')
            elif f == 8: k(f'buffer_store_dwordx2 v[{o}:{o+1}], v{vH+tb}, s[{SWS}:{SWS+3}], s{sHS} offen')
    stamp()
    if stamps:
        k('s_waitcnt vmcnt(0)')
        stamp()
        k('s_memrealtime s[92:93]')
        k('s_waitcnt lgkmcnt(0)')
        k(f's_sub_u32 s{60+2*nst[0]}, s92, s90'); nst[0] += 1
        k(f's_lshl_b32 s{sT0}, s2, 2')
        k(f's_add_u32 s{sT0}, s{sT0}, s{sW}')
        k(f's_lshl_b32 s{sT0}, s{sT0}, 5')
        k(f's_add_u32 s{sT0}, s{sT0}, {STAMP + 4*0x10000}')
        k('v_mov_b32 v2, 0')
        for i in range(nst[0]):
            k(f'v_mov_b32 v1, s{60+2*i}')
            k(f'buffer_store_dword v1, v2, s[{SWS}:{SWS+3}], s{sT0} offen offset:{4*i}')
    k(f'END_{name}:')
    k('s_endpgm')
    return k
if __name__ == '__main__':
    import chk
    k = build(stamps=True, opt=dict(verbose=True))
    t = assemble_file([k]); open('k4.s', 'w').write(t)
    e = chk.check(t) + chk.check_waits(t, k.name)
    print('\n'.join(e[:40])); print(len(e), 'problems')
```

```python
import math, struct
from asmlib import *
from layout import *
def f2u(x): return struct.unpack('<I', struct.pack('<f', x))[0]
MF = 'v_mfma_f32_16x16x32_bf16'
SB, SWT, SWS, SX = 8, 12, 16, 20
sW, sT0, sT1, sTB, sCB, sBO, sAO, sM0, sU = 24, 25, 26, 27, 28, 29, 30, 31, 32
vB, vA, vR, vL16 = 1, 6, 10, 14
ACC = 16
vX = 96
aA, aB = 0, 32
TBL = 131072
def build(mode, name=None, stamps=False, opt=None):
    opt = opt or {}
    name = name or f'k{mode}_kernel'
    KS = 32 if mode == 3 else 36
    BBUF = OBUF if mode == 3 else HH
    BSTR = 4*KS*1024
    R = opt.get('R', 8)
    k = E(name, 240, 256, lds=131072 + 1024, vgpr=192, agpr=192)
    nst = [0]
    def stamp():
        if stamps:
            k(f's_memtime s[{60 + 2*nst[0]}:{61 + 2*nst[0]}]'); nst[0] += 1
    k(f'''s_and_b32 s{sT0}, s2, 7
    s_lshr_b32 s{sT1}, s2, 3
    s_mul_i32 s{sT0}, s{sT0}, 30
    s_add_u32 s{sT0}, s{sT0}, s{sT1}
    s_cmp_ge_u32 s2, 240
    s_cbranch_scc1 END_{name}
    s_cmp_ge_u32 s{sT0}, 234
    s_cbranch_scc1 END_{name}''')
    stamp()
    if stamps: k('s_memrealtime s[90:91]')
    k(f'''s_load_dwordx2 s[40:41], s[0:1], {32 if mode == 3 else 64}
    s_load_dwordx2 s[42:43], s[0:1], 104
    s_load_dwordx2 s[44:45], s[0:1], {0 if mode == 3 else 88}
    v_lshrrev_b32 v15, 6, v0
    s_mul_i32 s{sTB}, s{sT0}, 57
    v_readfirstlane_b32 s{sW}, v15
    s_lshr_b32 s{sTB}, s{sTB}, 9
    s_mul_i32 s{sT1}, s{sTB}, 9
    s_sub_u32 s{sCB}, s{sT0}, s{sT1}
    s_mul_i32 s{sTB}, s{sTB}, 5
    v_and_b32 v0, 63, v0
    v_lshlrev_b32 v{vL16}, 4, v0
    v_mov_b32 v{vB}, v{vL16}''')
    for tb in range(1, 5): k(f'v_add_u32 v{vB+tb}, {tb*BSTR}, v{vL16}')
    k(f'''v_lshrrev_b32 v16, 3, v0
    v_and_b32 v17, 7, v0
    v_lshrrev_b32 v18, 4, v0
    v_lshlrev_b32 v18, 1, v18
    v_xor_b32 v17, v17, v18
    v_mul_u32_u24 v16, 1152, v16
    v_lshl_add_u32 v{vA}, v17, 4, v16''')
    for i in range(1, 4): k(f'v_add_u32 v{vA+i}, {i*(9216 - 1024)}, v{vA}')
    k(f'''s_mul_i32 s{sBO}, s{sTB}, {BSTR}
    s_mul_i32 s{sT0}, s{sW}, {KS*1024}
    s_add_u32 s{sBO}, s{sBO}, s{sT0}
    s_mul_i32 s{sAO}, s{sW}, {KS*32*1152}
    s_lshl_b32 s{sT0}, s{sCB}, 7
    s_add_u32 s{sAO}, s{sAO}, s{sT0}
    s_lshl_b32 s{sM0}, s{sW}, 15
    s_waitcnt lgkmcnt(0)
    s_add_u32 s{SB}, s42, {BBUF}
    s_addc_u32 s{SB+1}, s43, 0
    s_and_b32 s{SB+1}, s{SB+1}, 0xffff
    s_mov_b32 s{SB+2}, {128*BSTR}
    s_mov_b32 s{SB+3}, 0x00020000''')
    srd(k, SWT, 40, 4*KS*32*1152)
    def loads(s):
        o = [f's_add_u32 m0, s{sM0}, {(s % 8)*4096}']
        if s: o.append(f's_add_u32 s{sAO}, s{sAO}, {32*1152}')
        if s and s % 4 == 0: o.append(f's_add_u32 s{sBO}, s{sBO}, 4096')
        b = [('vm', f'buffer_load_dwordx4 a[{aB+20*(s%R)+4*tb}:{aB+20*(s%R)+4*tb+3}], v{vB+tb}, s[{SB}:{SB+3}], s{sBO} offen offset:{(s%4)*1024}', f'S{s}') for tb in range(5)]
        a = [('vm', f'buffer_load_dwordx4 v{vA+i}, s[{SWT}:{SWT+3}], s{sAO} offen offset:{i*1024} lds', f'S{s}') for i in range(4)]
        return o + [b[0], a[0], b[1], a[1], b[2], a[2], b[3], a[3], b[4]]
    def reads(s):
        return [('ds', f'ds_read_b64_tr_b16 a[{aA+16*(s&1)+4*i+2*j}:{aA+16*(s&1)+4*i+2*j+1}], v{vR+i} offset:{(s%8)*4096 + j*2048}', f'A{s}') for i in range(4) for j in range(2)]
    for it in loads(0): k.item(it)
    srd(k, SWS, 42, WS_BYTES); srd(k, SX, 44, 2048*1152)
    k(f'''v_lshrrev_b32 v16, 2, v0
    v_bfe_u32 v17, v0, 3, 2
    v_and_b32 v18, 3, v0
    v_lshlrev_b32 v18, 3, v18
    v_lshl_add_u32 v18, v17, 5, v18
    v_lshl_add_u32 v18, v16, 7, v18
    v_add_u32 v{vR}, s{sM0}, v18''')
    for i in range(1, 4): k(f'v_xor_b32 v{vR+i}, {32*i}, v{vR}')
    for s in range(1, R - 1):
        for it in loads(s): k.item(it)
    vXA, vST, vWR, vRD, vTB, vL4 = vX, vX+1, vX+2, vX+6, vX+8, vX+9
    XR, MP = vX + 12, vX + 24
    k(f'''v_and_b32 v16, 15, v0
    v_lshrrev_b32 v17, 4, v0
    v_mul_u32_u24 v{vXA}, 1152, v16
    v_lshl_add_u32 v{vXA}, v17, 4, v{vXA}
    v_lshrrev_b32 v18, 5, v0
    v_lshlrev_b32 v18, 2, v18
    v_lshl_add_u32 v{vST}, v16, 4, v18
    v_xor_b32 v18, v17, v16
    v_lshlrev_b32 v18, 4, v18
    v_lshl_add_u32 v18, v16, 8, v18
    v_add_u32 v{vWR}, s{sM0}, v18
    s_and_b32 s{sT0}, s{sW}, 1
    s_lshl_b32 s{sT1}, s{sT0}, 3
    v_lshl_add_u32 v18, v17, 1, s{sT1}
    v_lshlrev_b32 v{vTB}, 4, v18
    v_add_u32 v{vTB}, {TBL}, v{vTB}
    v_xor_b32 v18, v18, v16
    v_lshlrev_b32 v18, 4, v18
    v_lshl_add_u32 v18, v16, 8, v18
    s_lshr_b32 s{sT1}, s{sW}, 1
    s_lshl_b32 s{sU}, s{sT1}, 12
    v_add_u32 v{vRD}, s{sU}, v18
    v_xor_b32 v{vRD+1}, 16, v{vRD}
    v_lshlrev_b32 v{vL4}, 2, v0
    s_add_u32 s{sU}, s{sTB}, s{sT1}
    s_mul_i32 s{sU+1}, s{sU}, 18432
    s_lshl_b32 s{sT1}, s{sCB}, 1
    s_add_u32 s{sT1}, s{sT1}, s{sT0}
    s_lshl_b32 s{sU+2}, s{sT1}, 6
    s_add_u32 s{sU+2}, s{sU+2}, s{sU+1}
    s_lshl_b32 s{sT1}, s{sT1}, 10
    s_add_u32 s{sU+1}, s{sU+1}, s{sT1}
    s_add_u32 s{sU+1}, s{sU+1}, {X1}
    s_lshl_b32 s{sU+3}, s{sCB}, 7
    s_add_u32 s{sU+3}, s{sU+3}, s{sU}
    s_lshl_b32 s{sU+3}, s{sU+3}, 8
    s_lshl_b32 s{sT0}, s{sT0}, 3
    s_add_u32 s{sU+3}, s{sU+3}, s{sT0}
    s_add_u32 s{sU+3}, s{sU+3}, {STAT}
    s_add_u32 s{sU+4}, s{sW}, 2
    s_mul_i32 s{sU+4}, s{sU+4}, 2304
    s_lshl_b32 s{sT0}, s{sCB}, 8
    s_add_u32 s{sU+4}, s{sU+4}, s{sT0}
    s_add_u32 s{sU+4}, s{sU+4}, {MODP}''')
    for i in range(1, 4): k(f'v_xor_b32 v{vWR+i}, {64*i}, v{vWR}')
    late = []
    for p in range(4):
        late.append(('vm', f'buffer_load_dword v{MP+p}, v{vL4}, s[{SWS}:{SWS+3}], s{sU+4} offen', 'MP'))
        if p < 3: late.append(f's_add_u32 s{sU+4}, s{sU+4}, {3456*4}')
    for n in range(3):
        late.append(f's_add_u32 s{sT0}, s{sU+2 if mode == 3 else sU+1}, {n*2*18432}')
        if mode == 3: late.append(('vm', f'buffer_load_dwordx4 v[{XR+4*n}:{XR+4*n+3}], v{vXA}, s[{SX}:{SX+3}], s{sT0} offen', 'XR'))
        else: late.append(('vm', f'buffer_load_dwordx4 v[{XR+4*n}:{XR+4*n+3}], v{vL16}, s[{SWS}:{SWS+3}], s{sT0} offen', 'XR'))
    k.wait(vm=['S0'])
    stamp()
    for it in reads(0): k.item(it)
    for s in range(KS):
        gaps = [[] for _ in range(20)]
        if s + 1 < KS:
            k.wait(vm=[f'S{s+1}'], lg0=True)
            rd = reads(s+1)
            for g in range(4): gaps[g] += rd[2*g:2*g+2]
        else: k.wait(lg0=True)
        ld = loads(s + R - 1) if s + R - 1 < KS else (late if s + R - 1 == KS else [])
        g = 4; pend = []
        for it in ld:
            if isinstance(it, str): pend.append(it); continue
            for i, sc in enumerate(reversed(pend)): gaps[g - i].insert(0, sc)
            pend = []
            gaps[g].append(it); g += 1 if g >= 16 or ld is late else 2
        n = 0
        for i in range(4):
            for t in range(5):
                tb = t if i % 2 == 0 else 4 - t
                d = ACC + 4*(4*tb + i); a = aA + 16*(s & 1) + 4*i; b = aB + 20*(s % R) + 4*tb
                k(f'{MF} v[{d}:{d+3}], a[{a}:{a+3}], a[{b}:{b+3}], ' + (f'v[{d}:{d+3}]' if s else '0'))
                for it in gsort(gaps[n]): k.item(it)
                n += 1
    stamp()
    k.wait(vm=['MP'])
    k(f'''v_add_f32 v{MP}, v{MP}, v{MP+1}
    v_add_f32 v{MP+2}, v{MP+2}, v{MP+3}
    v_add_f32 v{MP}, v{MP}, v{MP+2}
    s_cmp_eq_u32 s{sW}, 2
    s_cselect_b32 s{sT0}, 1.0, 0
    v_cvt_pk_bf16_f32 v{MP}, 0, v{MP}
    v_add_f32 v{MP}, s{sT0}, v{MP}
    v_cvt_pk_bf16_f32 v{MP}, 0, v{MP}
    s_lshl_b32 s{sT0}, s{sW}, 8
    s_add_u32 s{sT0}, s{sT0}, {TBL}
    v_add_u32 v{MP+1}, s{sT0}, v{vL4}''')
    k.ds(f'ds_write_b32 v{MP+1}, v{MP}')
    for i in range(4):
        for tb in range(5):
            d = ACC + 4*(4*tb + i)
            k.ds(f'ds_write_b128 v{vWR+i}, v[{d}:{d+3}] offset:{tb*4096}')
    if mode == 3:
        k(f'''s_sub_u32 s{sT0}, s{sW}, 1
        s_cmp_gt_u32 s{sT0}, 1
        s_cbranch_scc1 NOPUB_{name}
        s_cmp_lg_u32 s{sTB}, 0
        s_cbranch_scc1 NOPUB_{name}
        s_mul_i32 s{sT0}, s{sT0}, 1152
        s_lshl_b32 s{sT1}, s{sCB}, 7
        s_sub_u32 s{sT0}, s{sT1}, s{sT0}
        s_add_u32 s{sT0}, s{sT0}, {CSV + 1152}
        v_lshlrev_b32 v{MP+1}, 1, v0
        buffer_store_short_d16_hi v{MP}, v{MP+1}, s[{SWS}:{SWS+3}], s{sT0} offen
        NOPUB_{name}:''')
    k.wait(lg0=True)
    k('s_barrier')
    G, C = 128, 136
    go = 0 if mode == 3 else 768
    for b in range(2): k.ds(f'ds_read_b128 v[{G+4*b}:{G+4*b+3}], v{vTB} offset:{go + 16*b}', 'T')
    if mode == 3:
        for b in range(2): k.ds(f'ds_read_b128 v[{C+4*b}:{C+4*b+3}], v{vTB} offset:{512 + 16*b}', 'T')
    k(f'v_add_u32 v{vWR}, 0x10000, v{vRD}')
    k(f'v_add_u32 v{vWR+1}, 0x10000, v{vRD+1}')
    def ureads(n):
        base = [16, 48, 144][n]
        for w in range(4):
            for b in range(2):
                k.ds(f'ds_read_b128 v[{base+8*w+4*b}:{base+8*w+4*b+3}], v{(vRD if w < 2 else vWR)+b} offset:{(w&1)*32768 + n*8192}', f'U{n}')
    def unit(n):
        base = [16, 48, 144][n]; T = 80
        pk = lambda r: f'v[{r}:{r+1}]'
        for i in range(4):
            k(f'v_lshlrev_b32 v{T+2*i}, 16, v{XR+4*n+i}')
            k(f'v_and_b32 v{T+2*i+1}, 0xffff0000, v{XR+4*n+i}')
        k.wait(lg=[f'U{n}'])
        for i in range(4):
            k(f'v_pk_add_f32 {pk(base+2*i)}, {pk(base+2*i)}, {pk(base+8+2*i)}')
            k(f'v_pk_add_f32 {pk(base+16+2*i)}, {pk(base+16+2*i)}, {pk(base+24+2*i)}')
        for i in range(4): k(f'v_pk_add_f32 {pk(base+2*i)}, {pk(base+2*i)}, {pk(base+16+2*i)}')
        for i in range(4): k(f'v_pk_fma_f32 {pk(base+2*i)}, {pk(base+2*i)}, {pk(G+2*i)}, {pk(T+2*i)}')
        for i in range(4): k(f'v_cvt_pk_bf16_f32 v{base+8+i}, v{base+2*i}, v{base+2*i+1}')
        if mode == 5:
            k(f'buffer_store_dwordx4 v[{base+8}:{base+11}], v{vXA}, s[{SX}:{SX+3}], s{sU+2} offen')
            return
        k(f'buffer_store_dwordx4 v[{base+8}:{base+11}], v{vL16}, s[{SWS}:{SWS+3}], s{sU+1} offen')
        for i in range(4): k(f'v_pk_mul_f32 {pk(base+16+2*i)}, {pk(base+2*i)}, {pk(C+2*i)}')
        k(f's_add_u32 s{sT0}, s{sU+1}, {YB - X1}')
        for i in range(4): k(f'v_cvt_pk_bf16_f32 v{base+12+i}, v{base+16+2*i}, v{base+16+2*i+1}')
        k(f'buffer_store_dwordx4 v[{base+12}:{base+15}], v{vL16}, s[{SWS}:{SWS+3}], s{sT0} offen')
        s1, s2 = base + 24, base + 26
        k(f'v_pk_add_f32 {pk(s1)}, {pk(base)}, {pk(base+2)}')
        k(f'v_pk_mul_f32 {pk(s2)}, {pk(base)}, {pk(base)}')
        for i in range(1, 4):
            if i > 1: k(f'v_pk_add_f32 {pk(s1)}, {pk(s1)}, {pk(base+2*i)}')
            k(f'v_pk_fma_f32 {pk(s2)}, {pk(base+2*i)}, {pk(base+2*i)}, {pk(s2)}')
        k(f'''v_add_f32 v{s1}, v{s1}, v{s1+1}
        v_add_f32 v{s2}, v{s2}, v{s2+1}
        s_nop 1
        v_permlane32_swap_b32 v{s1}, v{s2}
        v_add_f32 v{s1}, v{s1}, v{s2}
        v_mov_b32 v{s2}, v{s1}
        s_nop 1
        v_permlane16_swap_b32 v{s1}, v{s2}
        v_add_f32 v{s1}, v{s1}, v{s2}
        buffer_store_dword v{s1}, v{vST}, s[{SWS}:{SWS+3}], s{sU+3} offen''')
    ureads(0); k.wait(lg=['T']); ureads(1)
    k('s_waitcnt vmcnt(0)'); k.vq = []
    for n in range(3):
        if n:
            k(f'''s_add_u32 s{sU}, s{sU}, 2
            s_cmp_ge_u32 s{sU}, 128
            s_cbranch_scc1 DONE_{name}
            s_add_u32 s{sU+1}, s{sU+1}, {2*18432}
            s_add_u32 s{sU+2}, s{sU+2}, {2*18432}
            s_add_u32 s{sU+3}, s{sU+3}, 512''')
        if n == 2:
            k(f's_cmp_ge_u32 s{sW}, 2')
            k(f's_cbranch_scc1 DONE_{name}')
        if n == 1: ureads(2)
        unit(n)
    k(f'DONE_{name}:')
    stamp()
    if stamps:
        k('s_waitcnt vmcnt(0)')
        stamp()
        k('s_memrealtime s[92:93]')
        k('s_waitcnt lgkmcnt(0)')
        k(f's_sub_u32 s{60+2*nst[0]}, s92, s90'); nst[0] += 1
        k(f's_lshl_b32 s{sT0}, s2, 2')
        k(f's_add_u32 s{sT0}, s{sT0}, s{sW}')
        k(f's_lshl_b32 s{sT0}, s{sT0}, 5')
        k(f's_add_u32 s{sT0}, s{sT0}, {STAMP + mode*0x10000}')
        k('v_mov_b32 v2, 0')
        for i in range(nst[0]):
            k(f'v_mov_b32 v1, s{60+2*i}')
            k(f'buffer_store_dword v1, v2, s[{SWS}:{SWS+3}], s{sT0} offen offset:{4*i}')
    k(f'END_{name}:')
    k('s_endpgm')
    return k
if __name__ == '__main__':
    import chk
    ks = [build(3, stamps=True), build(5, stamps=True)]
    t = assemble_file(ks); open('kg.s', 'w').write(t)
    e = chk.check(t)
    for k in ks: e += chk.check_waits(t, k.name)
    print('\n'.join(e[:40])); print(len(e), 'problems')
```

```python
import sys
sys.path.insert(0, 'gen')
import asmlib, chk, k1, k2b, kg, k4
KN = 'adaLN_cond__gqa_block_cached__glu_gated_geglu__prompt'
def header():
    out = []
    for l in open(f'cdna_kernels/{KN}.s.ref'):
        if l.startswith('; Override'): break
        out.append(l)
    return ''.join(out)
def make(stamps=False, opts=None, check=True):
    o = dict(opts or {})
    o[1] = dict(o.get(1) or {})
    if o[1].get('pfc', 1): o[1]['pfc'] = (KN + '_kernel', o[1].get('pfn', 11))
    ks = [k1.build(opt=o.get(1)), k2b.build(name=KN + '_kernel', stamps=stamps, opt=o.get(2)), kg.build(3, stamps=stamps, opt=o.get(3)),
          k4.build(stamps=stamps, opt=o.get(4)), kg.build(5, stamps=stamps, opt=o.get(5))]
    t = asmlib.assemble_file(ks, header=header())
    if check:
        e = chk.check(t)
        for k in ks: e += chk.check_waits(t, k.name)
        assert not e, e[:10]
    return t
if __name__ == '__main__':
    path = sys.argv[1] if len(sys.argv) > 1 else f'cdna_kernels/{KN}.s'
    opts = eval(sys.argv[2]) if len(sys.argv) > 2 else None
    open(path, 'w').write(make(opts=opts))
    print('wrote', path)
```

```python
import math, struct
from asmlib import *
from layout import *
def f2u(x): return struct.unpack('<I', struct.pack('<f', x))[0]
def build(name='k1_kernel', opt=None):
    opt = opt or {}
    k = E(name, 256, 256, lds=1024, vgpr=128)
    sW, sT0, sT1 = 24, 25, 26
    k(f'''s_cmp_ge_u32 s2, 256
    s_cbranch_scc1 END_{name}
    s_load_dwordx2 s[40:41], s[0:1], 0
    s_load_dwordx4 s[44:47], s[0:1], 72
    s_load_dwordx2 s[42:43], s[0:1], 104
    s_load_dwordx4 s[48:51], s[0:1], 8
    s_load_dwordx2 s[52:53], s[0:1], 24
    v_lshrrev_b32 v1, 6, v0
    v_and_b32 v0, 63, v0
    v_readfirstlane_b32 s{sW}, v1
    v_lshrrev_b32 v2, 3, v0
    v_and_b32 v3, 7, v0
    s_cmp_eq_u32 s{sW}, 3
    s_cbranch_scc1 LN_{name}
    s_and_b32 s{sT0}, s2, 3
    s_lshr_b32 s{sT1}, s2, 2
    s_mul_i32 s27, s{sT0}, 144
    s_mul_i32 s28, s{sW}, 48
    s_add_u32 s27, s27, s28
    s_lshl_b32 s28, s27, 1
    s_mul_i32 s27, s27, 6912
    s_lshl_b32 s29, s{sT1}, 7
    s_add_u32 s27, s27, s29
    v_mul_u32_u24 v4, 6912, v2
    v_lshl_add_u32 v4, v3, 4, v4
    v_lshlrev_b32 v5, 1, v2
    s_waitcnt lgkmcnt(0)''')
    srd(k, 8, 44, 1152); srd(k, 12, 46, 576*6912); srd(k, 16, 42, WS_BYTES)
    pfw = []
    if opt.get('pfw', 0):
        srd(k, 20, 52, 576*8192)
        k(f'''s_lshr_b32 s30, s2, 3
        s_mul_i32 s30, s30, 18
        s_mul_i32 s31, s{sW}, 6
        s_add_u32 s30, s30, s31
        s_lshl_b32 s30, s30, 13
        s_and_b32 s31, s2, 7
        s_lshl_b32 s31, s31, 10
        s_add_u32 s30, s30, s31
        v_lshlrev_b32 v60, 13, v2
        v_lshl_add_u32 v60, v3, 7, v60''')
        pfw = ['buffer_load_dword v61, v60, s[20:23], s30 offen']
    k(f's_cmp_lt_u32 s2, 216')
    k(f's_cbranch_scc1 GV_{name}')
    for x in pfw: k(x)
    k('s_endpgm')
    k(f'GV_{name}:')
    for n in range(6): k.vm(f'buffer_load_ushort v{8+n}, v5, s[8:11], s28 offen offset:{16*n}', 'c')
    for n in range(6):
        k.vm(f'buffer_load_dwordx4 v[{32+4*n}:{35+4*n}], v4, s[12:15], s27 offen', f'w{n}')
        if n < 5: k(f's_add_u32 s27, s27, {8*6912}')
    for x in pfw: k.vm(x)
    k(f'''s_mul_i32 s27, s{sT0}, {3456*4}
    s_lshl_b32 s29, s{sT1}, 8
    s_add_u32 s27, s27, s29
    s_add_u32 s27, s27, {MODP}
    v_lshrrev_b32 v6, 4, v0
    v_lshlrev_b32 v6, 3, v6
    v_lshl_add_u32 v6, v3, 5, v6
    v_lshl_add_u32 v6, v1, 8, v6
    v_lshlrev_b32 v7, 2, v0''')
    for i in range(8): k(f'v_mov_b32 v{20+i}, 0')
    k.wait(vm=['c'])
    for n in range(6): k(f'v_lshlrev_b32 v{8+n}, 16, v{8+n}')
    for n in range(6): k(f'v_mul_f32 v{14+n}, {f2u(-math.log2(math.e))}, v{8+n}')
    for n in range(6): k(f'v_exp_f32 v{14+n}, v{14+n}')
    for n in range(6): k(f'v_add_f32 v{14+n}, 1.0, v{14+n}')
    for n in range(6): k(f'v_rcp_f32 v{14+n}, v{14+n}')
    for n in range(6): k(f'v_mul_f32 v{8+n}, v{8+n}, v{14+n}')
    for n in range(6): k(f'v_cvt_pk_bf16_f32 v{8+n}, v{8+n}, 0')
    for n in range(6): k(f'v_lshlrev_b32 v{14+n}, 16, v{8+n}')
    for n in range(6):
        k.wait(vm=[f'w{n}'])
        if opt.get('dot2', 1):
            for i in range(4):
                k(f'v_dot2c_f32_bf16 v{20+2*i}, v{32+4*n+i}, v{8+n}')
                k(f'v_dot2c_f32_bf16 v{21+2*i}, v{32+4*n+i}, v{14+n}')
        else:
            for i in range(4):
                k(f'v_lshlrev_b32 v28, 16, v{32+4*n+i}')
                k(f'v_and_b32 v29, 0xffff0000, v{32+4*n+i}')
                k(f'v_fmac_f32 v{20+2*i}, v28, v{14+n}')
                k(f'v_fmac_f32 v{21+2*i}, v29, v{14+n}')
    k('s_nop 3')
    for i in range(4): k(f'v_permlane32_swap_b32 v{20+i}, v{24+i}')
    for i in range(4): k(f'v_add_f32 v{20+i}, v{20+i}, v{24+i}')
    k('s_nop 0')
    for i in range(2): k(f'v_permlane16_swap_b32 v{20+i}, v{22+i}')
    for i in range(2): k(f'v_add_f32 v{20+i}, v{20+i}, v{22+i}')
    k('s_nop 0')
    for i in range(2): k(f'v_add_f32_dpp v{20+i}, v{20+i}, v{20+i} row_ror:8 row_mask:0xf bank_mask:0xf')
    k.ds('ds_write_b64 v6, v[20:21]')
    k.wait(lg0=True)
    k(f'''s_barrier
    s_cmp_lg_u32 s{sW}, 0
    s_cbranch_scc1 END_{name}''')
    for w in range(3): k.ds(f'ds_read_b32 v{20+w}, v7 offset:{256*w}')
    k.wait(lg0=True)
    k('''v_add_f32 v20, v20, v21
    v_add_f32 v20, v20, v22
    buffer_store_dword v20, v7, s[16:19], s27 offen''')
    k(f'END_{name}:')
    k('s_endpgm')
    k(f'LN_{name}:')
    k.vq = []; k.lq = []
    k(f'''v_mul_u32_u24 v4, 1152, v3
    v_lshl_add_u32 v4, v2, 4, v4
    s_mul_i32 s27, s2, {8*1152}
    s_waitcnt lgkmcnt(0)''')
    srd(k, 8, 40, 2048*1152); srd(k, 16, 42, WS_BYTES)
    for n in range(9): k.vm(f'buffer_load_dwordx4 v[{8+4*n}:{11+4*n}], v4, s[8:11], s27 offen offset:{128*n}', f'x{n}')
    k(f'''s_lshr_b32 s28, s2, 1
    s_mul_i32 s28, s28, 18432
    s_and_b32 s29, s2, 1
    s_lshl_b32 s29, s29, 7
    s_add_u32 s28, s28, s29
    v_lshlrev_b32 v5, 4, v3
    v_lshl_add_u32 v5, v2, 8, v5''')
    if XN: k(f's_add_u32 s28, s28, {XN}')
    k('v_lshlrev_b32 v120, 7, v0')
    if opt.get('pfkv', 0):
        k(f'''s_bitcmp1_b32 s2, 4
        s_cselect_b32 s20, s50, s48
        s_cselect_b32 s21, s51, s49
        s_and_b32 s21, s21, 0xffff
        s_mov_b32 s22, {16*524288}
        s_mov_b32 s23, 0x00020000
        s_and_b32 s30, s2, 7
        s_lshl_b32 s30, s30, 1
        s_bfe_u32 s31, s2, 0x10003
        s_add_u32 s30, s30, s31
        s_lshl_b32 s30, s30, 19
        s_lshr_b32 s31, s2, 5
        s_lshl_b32 s31, s31, 13
        s_add_u32 s30, s30, s31''')
        k.vm('buffer_load_dword v121, v120, s[20:23], s30 offen')
    if opt.get('pfc'):
        lab, nb = opt['pfc']
        k(f'''s_lshr_b32 s30, s2, 3
        s_min_u32 s30, s30, {nb - 1}
        s_lshl_b32 s30, s30, 13
        v_add_u32 v120, s30, v120
        s_getpc_b64 s[32:33]
        PC_{name}:
        s_add_u32 s32, s32, {lab}-PC_{name}
        s_addc_u32 s33, s33, 0''')
        k.vm('global_load_dword v122, v120, s[32:33]')
    X = 48
    def allred(r, t):
        k('s_nop 1')
        k(f'v_add_f32_dpp v{r}, v{r}, v{r} row_ror:8 row_mask:0xf bank_mask:0xf')
        for sw in ('16', '32'):
            k(f'v_mov_b32 v{t}, v{r}'); k('s_nop 1')
            k(f'v_permlane{sw}_swap_b32 v{r}, v{t}')
            k(f'v_add_f32 v{r}, v{r}, v{t}')
    for n in range(9):
        k.wait(vm=[f'x{n}'])
        for i in range(4):
            k(f'v_lshlrev_b32 v{X+8*n+2*i}, 16, v{8+4*n+i}')
            k(f'v_and_b32 v{X+8*n+2*i+1}, 0xffff0000, v{8+4*n+i}')
        for i in range(2):
            a = X + 8*n + 4*i
            if n == 0: k(f'v_pk_add_f32 v[{44+2*i}:{45+2*i}], v[{a}:{a+1}], v[{a+2}:{a+3}]')
            else:
                k(f'v_pk_add_f32 v[44:45], v[44:45], v[{a}:{a+1}]')
                k(f'v_pk_add_f32 v[46:47], v[46:47], v[{a+2}:{a+3}]')
    k('v_pk_add_f32 v[44:45], v[44:45], v[46:47]')
    k('v_add_f32 v44, v44, v45')
    allred(44, 45)
    k(f'v_mul_f32 v6, {f2u(-1/576)}, v44')
    for i in range(36):
        a = X + 2*i; d = 44 + 2*(i & 1)
        k(f'v_pk_add_f32 v[{a}:{a+1}], v[{a}:{a+1}], v[6:7] op_sel_hi:[1,0]')
        if i >= 1:
            a -= 2
            if i < 3: k(f'v_pk_mul_f32 v[{d}:{d+1}], v[{a}:{a+1}], v[{a}:{a+1}]')
            else: k(f'v_pk_fma_f32 v[{d}:{d+1}], v[{a}:{a+1}], v[{a}:{a+1}], v[{d}:{d+1}]')
    a = X + 70
    k(f'v_pk_fma_f32 v[44:45], v[{a}:{a+1}], v[{a}:{a+1}], v[44:45]')
    k('v_pk_add_f32 v[44:45], v[44:45], v[46:47]')
    k('v_add_f32 v44, v44, v45')
    allred(44, 45)
    k(f'v_mov_b32 v45, {f2u(1e-5)}')
    k(f'v_fmac_f32 v45, {f2u(1/576)}, v44')
    k('v_rsq_f32 v6, v45')
    k('s_barrier')
    for n in range(9):
        for i in range(4):
            a = X + 8*n + 2*i
            k(f'v_pk_mul_f32 v[{a}:{a+1}], v[{a}:{a+1}], v[6:7] op_sel_hi:[1,0]')
        for i in range(4):
            a = X + 8*n + 2*i
            k(f'v_cvt_pk_f16_f32 v{8+4*n+i}, v{a}, v{a+1}')
        k(f'buffer_store_dwordx4 v[{8+4*n}:{11+4*n}], v5, s[16:19], s28 offen offset:{(n&1)*2048}')
        if n & 1: k('s_add_u32 s28, s28, 4096')
    k('s_endpgm')
    return k
if __name__ == '__main__':
    import chk
    k = build(); t = assemble_file([k]); open('k1.s', 'w').write(t)
    e = chk.check(t) + chk.check_waits(t, k.name) + chk.check_waits(t, k.name, forced=[f'LN_{k.name}'])
    print('\n'.join(e[:40])); print(len(e), 'problems')
```

```python
import math, struct
from asmlib import *
from layout import *
def f2u(x): return struct.unpack('<I', struct.pack('<f', x))[0]
MF = 'v_mfma_f32_16x16x32_bf16'
MARGIN = 20.0
THR = 2.0 ** 30
SK, SV, SW, SWS = 8, 12, 16, 20
sW, sG, sRB, sKO, sMB, sT0, sT1, sTHR, sRET, sXO, sWO, sW4K, sMRG, sOO = 24, 25, 26, 27, 28, 29, 30, 31, 32, 34, 36, 37, 38, 48
vWA, vCS, vWV, vL16, vT0 = 1, 9, 10, 14, 15
vKV0, vKV1, vVV0, vVV1 = 10, 11, 12, 13
ACC = 16
S = [16, 48]; NM = 80; L = [96, 112]; P = [128, 144]; Q = 160
CSB = [224, 240]; HB = [144, 152]
vTM = 1
vKA, vVA, vE, vMX = 224, 228, 236, 244
aK, aV, aRING, aONE, aPARK = 128, 160, 192, 192, 160
TBL = 131072

def build(name='k2_kernel', stamps=False, opt=None):
    opt = opt or {}
    k = E(name, 256, 256, lds=131072 + 8192, vgpr=256, agpr=256)
    nst = [0]
    def stamp():
        if stamps:
            k(f's_memtime s[{60 + 2*nst[0]}:{61 + 2*nst[0]}]'); nst[0] += 1
    def emit(mfs, gaps):
        for m, g in zip(mfs, gaps):
            k(m)
            for it in gsort(g): k.item(it)
    k(f's_cmp_ge_u32 s2, 256')
    k(f's_cbranch_scc1 END_{name}')
    stamp()
    if stamps: k('s_memrealtime s[90:91]')
    k('s_load_dwordx4 s[40:43], s[0:1], 8')
    k('s_load_dwordx2 s[44:45], s[0:1], 24')
    k('s_load_dwordx2 s[46:47], s[0:1], 104')
    PF = opt.get('pf', 1)
    if PF:
        k('s_load_dwordx2 s[52:53], s[0:1], 32')
        k('s_load_dwordx4 s[76:79], s[0:1], 48')
        k('s_load_dwordx2 s[80:81], s[0:1], 64')
    k(f'''v_lshrrev_b32 v{vT0}, 6, v0
    s_and_b32 s{sT0}, s2, 7
    v_readfirstlane_b32 s{sW}, v{vT0}
    s_lshr_b32 s{sT1}, s2, 3
    s_lshl_b32 s{sG}, s{sT0}, 1
    s_and_b32 s{sT0}, s{sT1}, 1
    s_or_b32 s{sG}, s{sG}, s{sT0}
    s_lshr_b32 s{sRB}, s{sT1}, 1
    v_lshlrev_b32 v16, 4, v0
    v_and_b32 v0, 63, v0
    v_lshlrev_b32 v{vL16}, 4, v0
    s_lshl_b32 s{sW4K}, s{sW}, 12''')
    k(f'''v_lshrrev_b32 v17, 5, v0
    v_and_b32 v18, 31, v0
    v_lshlrev_b32 v18, 4, v18
    v_lshlrev_b32 v19, 5, v17
    v_xor_b32 v18, v18, v19
    v_lshl_add_u32 v18, v17, 13, v18
    s_lshr_b32 s{sT0}, s{sW}, 1
    s_lshl_b32 s{sT0}, s{sT0}, 18
    s_and_b32 s{sT1}, s{sW}, 1
    s_lshl_b32 s{sT1}, s{sT1}, 15
    s_add_u32 s{sT0}, s{sT0}, s{sT1}
    v_add_u32 v{vWV}, s{sT0}, v18''')
    for i in range(1, 4):
        k(f'v_xor_b32 v18, {64*i}, v{vWV}')
        k(f'v_add_u32 v{vWV+i}, {(8*(i>>1) + 2*(i&1))*8192 - i*1024}, v18')
    k(f'''s_lshl_b32 s{sMB}, s{sW}, 13
    s_lshl_b32 s{sXO}, s{sRB}, 2
    s_add_u32 s{sXO}, s{sXO}, s{sW}
    s_mul_i32 s{sXO}, s{sXO}, 36864''')
    if XN: k(f's_add_u32 s{sXO}, s{sXO}, {XN}')
    k(f's_add_u32 s{sXO+1}, s{sXO}, 18432')
    k('s_waitcnt lgkmcnt(0)')
    k(f'''s_mov_b32 s{SWS}, s46
    s_and_b32 s{SWS+1}, s47, 0xffff
    s_mov_b32 s{SWS+2}, {WS_BYTES}
    s_mov_b32 s{SWS+3}, 0x00020000
    s_lshl_b32 s{sT0}, s{sG}, 9
    s_add_u32 s{SW}, s44, s{sT0}
    s_addc_u32 s{SW+1}, s45, 0
    s_and_b32 s{SW+1}, s{SW+1}, 0xffff
    s_sub_u32 s{SW+2}, {576*8192}, s{sT0}
    s_mov_b32 s{SW+3}, 0x00020000''')
    for p in range(4):
        k(f's_mov_b32 s{sT0}, {MODP + p*3456*4}')
        k.vm(f'buffer_load_dwordx4 v[{20+8*p}:{23+8*p}], v16, s[{SWS}:{SWS+3}], s{sT0} offen', 'mod')
        k.vm(f'buffer_load_dwordx4 v[{24+8*p}:{27+8*p}], v16, s[{SWS}:{SWS+3}], s{sT0} offen offset:2304', 'mod')
    R = lambda s: (s + 2) % 4
    def wdma(s):
        out = []
        for half in range(2):
            out.append(f's_add_u32 m0, s{sMB}, {R(s)*32768 + half*4096}')
            out.append(f's_mov_b32 s{sWO}, {(s*64 + half*16)*8192}')
            for i in range(4):
                out.append(('vm', f'buffer_load_dwordx4 v{vWV+i}, s[{SW}:{SW+3}], s{sWO} offen offset:{i*1024} lds', f'W{s}'))
        return out
    def xnload(ks):
        out = []
        for tb in range(2):
            if ks % 4 == 0 and ks: out.append(f's_add_u32 s{sXO+tb}, s{sXO+tb}, 4096')
            r = Q + 8*(ks % 8) + 4*tb
            out.append(('vm', f'buffer_load_dwordx4 v[{r}:{r+3}], v{vL16}, s[{SWS}:{SWS+3}], s{sXO+tb} offen offset:{(ks%4)*1024}', f'X{ks}'))
        return out
    NPRE = opt.get('npre', 2)
    for it in wdma(0) + xnload(0) + xnload(1): k.item(it)
    VOFF = 3*8192 + 2048
    k(f'''s_lshl_b32 s{sT0}, s{sG}, 19
    s_add_u32 s{SK}, s40, s{sT0}
    s_addc_u32 s{SK+1}, s41, 0
    s_and_b32 s{SK+1}, s{SK+1}, 0xffff
    s_mov_b32 s{SK+2}, 524288
    s_mov_b32 s{SK+3}, 0x00020000
    s_add_u32 s{SV}, s42, s{sT0}
    s_addc_u32 s{SV+1}, s43, 0
    s_sub_u32 s{SV}, s{SV}, {VOFF}
    s_subb_u32 s{SV+1}, s{SV+1}, 0
    s_and_b32 s{SV+1}, s{SV+1}, 0xffff
    s_mov_b32 s{SV+2}, {524288 + VOFF}
    s_mov_b32 s{SV+3}, 0x00020000
    s_mov_b32 s{sTHR}, {f2u(THR)}
    s_mov_b32 s{sMRG}, {f2u(MARGIN)}''')
    if PF:
        k(f's_mov_b32 s54, {4096*1152}')
        for w in range(1, 4):
            k(f's_cmp_eq_u32 s{sW}, {w}')
            k(f's_cselect_b32 s52, s{74+2*w}, s52')
            k(f's_cselect_b32 s53, s{75+2*w}, s53')
            k(f's_cselect_b32 s54, {4608*1152}, s54')
        k(f'''s_and_b32 s53, s53, 0xffff
        s_mov_b32 s55, 0x00020000
        s_lshl_b32 s56, s2, 11''')
    k(f'''v_lshrrev_b32 v17, 4, v0
    v_and_b32 v18, 15, v0
    s_lshl_b32 s{sT0}, s{sW}, 3
    v_add_u32 v19, s{sT0}, v17
    v_lshlrev_b32 v52, 8, v19
    v_and_b32 v19, 15, v19
    v_xor_b32 v19, v19, v18
    v_lshl_add_u32 v19, v19, 4, v52
    v_accvgpr_write_b32 a{aPARK}, v19
    v_xor_b32 v19, 64, v19
    v_accvgpr_write_b32 a{aPARK+1}, v19
    v_lshlrev_b32 v19, 1, v17
    v_xor_b32 v19, v19, v18
    v_lshl_add_u32 v19, v19, 4, v52
    v_accvgpr_write_b32 a{aPARK+2}, v19
    v_xor_b32 v19, 0x80, v19
    v_accvgpr_write_b32 a{aPARK+3}, v19''')
    k(f'''v_lshrrev_b32 v18, 2, v0
    v_and_b32 v19, 7, v18
    v_and_b32 v52, 3, v0
    v_lshlrev_b32 v52, 3, v52
    v_lshl_add_u32 v52, v19, 5, v52
    v_lshl_add_u32 v53, v18, 9, v52
    v_add_u32 v{vWA}, 0x10000, v53''')
    for i in range(1, 8): k(f'v_xor_b32 v{vWA+i}, {32*i}, v{vWA}')
    k(f'''v_lshl_add_u32 v53, v19, 8, v52
    v_lshrrev_b32 v19, 5, v0
    v_lshl_add_u32 v53, v19, 12, v53
    v_add_u32 v53, 0x800, v53
    v_accvgpr_write_b32 a{aPARK+4}, v53
    v_lshlrev_b32 v{vCS}, 6, v17
    v_add_u32 v{vCS}, {TBL}, v{vCS}
    v_and_b32 v52, 1, v17
    v_lshl_or_b32 v52, v52, 1, v19
    v_and_b32 v18, 15, v0
    v_xor_b32 v52, v52, v18
    v_lshlrev_b32 v52, 4, v52
    v_and_b32 v19, 7, v0
    v_lshl_add_u32 v52, v19, 8, v52
    v_bfe_u32 v19, v0, 3, 1
    v_lshl_add_u32 v52, v19, 12, v52
    v_add_u32 v52, 0x10000, v52
    v_accvgpr_write_b32 a{aPARK+5}, v52
    v_and_b32 v19, 3, v0
    v_cmp_eq_u32 vcc, 0, v19
    v_mov_b32 v19, 0x3f803f80
    s_nop 0
    v_cndmask_b32 v19, 0, v19, vcc
    v_accvgpr_write_b32 a{aPARK+6}, v19''')
    for s in range(1, NPRE):
        for it in wdma(s) + xnload(2*s) + xnload(2*s+1): k.item(it)
    SC = 128.0 ** -0.5 * math.log2(math.e)
    k(f's_mov_b32 s{sT0}, {f2u(SC)}')
    k(f'''v_lshrrev_b32 v17, 5, v16
    v_and_b32 v18, 0x10, v16
    v_lshl_add_u32 v17, v17, 6, v18
    v_add_u32 v17, {TBL}, v17''')
    for i in range(128): k(f'v_accvgpr_write_b32 a{i}, 0')
    k.wait(vm=['mod'])
    for i in range(8):
        k(f'v_add_f32 v{20+i}, v{20+i}, v{28+i}')
        k(f'v_add_f32 v{36+i}, v{36+i}, v{44+i}')
    for i in range(8): k(f'v_add_f32 v{20+i}, v{20+i}, v{36+i}')
    for i in range(4): k(f'v_cvt_pk_bf16_f32 v{28+i}, v{20+2*i}, v{21+2*i}')
    for i in range(4):
        k(f'v_lshlrev_b32 v{20+2*i}, 16, v{28+i}')
        k(f'v_and_b32 v{21+2*i}, 0xffff0000, v{28+i}')
    for i in range(4): k(f'v_add_f32 v{24+i}, 1.0, v{24+i}')
    for i in range(2): k(f'v_cvt_pk_bf16_f32 v{28+i}, v{24+2*i}, v{25+2*i}')
    for i in range(2):
        k(f'v_lshlrev_b32 v{24+2*i}, 16, v{28+i}')
        k(f'v_and_b32 v{25+2*i}, 0xffff0000, v{28+i}')
    for i in range(8): k(f'v_mul_f32 v{20+i}, s{sT0}, v{20+i}')
    k.ds('ds_write_b128 v17, v[24:27]')
    k.ds('ds_write_b128 v17, v[20:23] offset:32')
    k.wait(vm=['W0'], lg0=True)
    k('s_barrier')
    stamp()
    def areads(f):
        ks, db = divmod(f, 16); s, kl = divmod(ks, 2)
        a = aRING + 4*(f % 16)
        return [('ds', f'ds_read_b64_tr_b16 a[{a+2*j}:{a+2*j+1}], v{vWA+(db&7)} offset:{kl*16384 + j*8192 + (db>>3)*256 + (R(s)&1)*32768}', f'A{f}') for j in range(2)]
    def csreads(ks):
        b = CSB[ks & 1]
        return [('ds', f'ds_read_b128 v[{b+4*q}:{b+4*q+3}], v{vCS} offset:{ks*256 + q*16}', f'C{ks}') for q in (0, 2, 1, 3)]
    def hcalc(ks):
        b = CSB[ks & 1]; x = Q + 8*(ks % 8); h = HB[ks & 1]
        out = [('wait', dict(vm=[f'X{ks}'], lg=[f'C{ks}']))]
        for i in range(4):
            out.append(f'v_fma_mix_f32 v{vT0}, v{x+i}, v{b+2*i}, v{b+8+2*i} op_sel:[0,0,0] op_sel_hi:[1,0,0]')
            out.append(f'v_fma_mix_f32 v{h+i}, v{x+i}, v{b+2*i+1}, v{b+9+2*i} op_sel:[1,0,0] op_sel_hi:[1,0,0]')
            out.append(f'v_fma_mix_f32 v{b+8+2*i}, v{x+4+i}, v{b+2*i}, v{b+8+2*i} op_sel:[0,0,0] op_sel_hi:[1,0,0]')
            out.append(f'v_cvt_pk_bf16_f32 v{h+i}, v{vT0}, v{h+i}')
            out.append(f'v_fma_mix_f32 v{b+9+2*i}, v{x+4+i}, v{b+2*i+1}, v{b+9+2*i} op_sel:[1,0,0] op_sel_hi:[1,0,0]')
            out.append(f'v_cvt_pk_bf16_f32 v{h+4+i}, v{b+8+2*i}, v{b+9+2*i}')
        return out
    def kvdma(t, vpart=True, vfix=None):
        out = [f's_add_u32 m0, s{sW4K}, {(t % 8)*16384}', f's_mov_b32 s{sKO}, {(t+2)*8192}']
        out.append(('vm', f'buffer_load_dwordx4 v{vKV0}, s[{SK}:{SK+3}], s{sKO} offen lds', f'S{t}'))
        out.append(('vm', f'buffer_load_dwordx4 v{vKV1}, s[{SK}:{SK+3}], s{sKO} offen offset:1024 lds', f'S{t}'))
        if vpart:
            if vfix is not None: out.append(f's_mov_b32 s{sKO}, {vfix}')
            out.append(('vm', f'buffer_load_dwordx4 v{vVV0}, s[{SV}:{SV+3}], s{sKO} offen offset:2048 lds', f'S{t}'))
            out.append(('vm', f'buffer_load_dwordx4 v{vVV1}, s[{SV}:{SV+3}], s{sKO} offen offset:3072 lds', f'S{t}'))
        return out
    def kreads(u, tag):
        return [('ds', f'ds_read_b128 a[{aK+16*kb+4*ks}:{aK+16*kb+4*ks+3}], v{vKA+ks} offset:{u*16384 + kb*8192}', f'{tag}{4*kb+ks}') for kb in range(2) for ks in range(4)]
    LA = opt.get('la', 6)
    PAUSE = 6
    for it in csreads(0) + csreads(1): k.item(it)
    for f in range(LA):
        for it in areads(f): k.item(it)
    for it in hcalc(0): k.item(it)
    k.wait(lg=['A0', 'A1'])
    k('s_nop 0')
    N = 576
    gaps = [[] for _ in range(N)]
    def place_vm(items, g, step):
        pend = []
        for it in items:
            if isinstance(it, str): pend.append(it); continue
            while gload(gaps[g]) > 0: g += 1
            for i, sc in enumerate(reversed(pend)): gaps[g - i].insert(0, sc)
            pend = []
            gaps[g].append(it); g += step
        return g
    early = []
    for s in range(NPRE, 4): early += wdma(s) + xnload(2*s) + xnload(2*s+1)
    if early: place_vm(early, 2, max(1, 48 // sum(1 for x in early if not isinstance(x, str))))
    for s in range(9):
        nb = 64*(s+1) - 2*LA
        if s <= 4: dm = wdma(s+4) + xnload(2*s+8) + xnload(2*s+9)
        elif s == 5: dm = kvdma(-2, vpart=False) + kvdma(-1, vpart=False)
        elif s == 6: dm = kvdma(0, vfix=3*8192) + kvdma(1)
        elif s == 7: dm = kvdma(2) + kvdma(3)
        else: dm = []
        place_vm(dm, nb + 2, 5)
        nxt = [f'W{s+1}'] if s < 8 else ['S-2', 'S-1']
        gaps[nb-2].append(('wait', dict(vm=nxt, lg0=True)))
        gaps[nb-1].append('s_barrier')
        if s in (1, 3, 5, 7):
            for i in range(8): gaps[nb - 5 + i//2].append(f'v_xor_b32 v{vWA+i}, 0x10000, v{vWA+i}')
        if s == 5:
            for i in range(4): gaps[nb - 7 + i//2].append(f'v_accvgpr_read_b32 v{vKV0+i}, a{aPARK+i}')
    for s in range(9):
        b = 64*s - 2*LA
        rd = []
        for f in range(32*s, 32*s+32):
            if f >= LA: rd += areads(f)
            if f % 16 == LA + 1 and f//16 + 2 < 18: rd += csreads(f//16 + 2)
        pour(gaps, rd, max(b, 0), b + 63 - PAUSE, cap=2)
    for ks in range(18):
        g = 32*ks
        if ks + 1 < 18: pour(gaps, hcalc(ks+1), g, g + 29, cap=2)
    for f in range(2, 288, 2):
        gaps[2*f - 1].append(('wait', dict(lg=[f'A{f}', f'A{f+1}'])))
    def qcvt(qb, tb, ks):
        q = Q + 16*(2*qb + tb) + 4*ks
        o = []
        for y in range(2):
            a = ACC + 4*((8*qb + 2*ks + y)*2 + tb)
            o += [f'v_cvt_pk_bf16_f32 v{q+2*y+i}, v{a+2*i}, v{a+2*i+1}' for i in range(2)]
        return o, [f'v_permlane16_swap_b32 v{q+i}, v{q+2+i}' for i in range(2)]
    def qhead(qb):
        o = []; pend = []
        for ks in range(4):
            for tb in range(2):
                c, sw = qcvt(qb, tb, ks)
                o += c + pend; pend = sw
        return o + ['v_nop', 'v_nop'] + pend
    g = 544
    nb = 576 - 2*LA
    pour(gaps, [f'v_accvgpr_read_b32 v{vKA}, a{aPARK+5}'] + [f'v_xor_b32 v{vKA+i}, {i*64}, v{vKA}' for i in range(1, 4)], g, g + 6)
    pour(gaps, kreads(2, 'K0_'), nb, nb + 7)
    h0 = qhead(0)
    pour(gaps, h0[:36], g + 8, 575, cap=2)
    if opt.get('verbose'):
        for ks in (0, 1, 2, 3, 8, 9, 16, 17): print('ks', ks, ''.join(str(gload(x)) for x in gaps[32*ks:32*ks+32]))
    mfs = []
    for n in range(N):
        f, tb = divmod(n, 2); ks, db = divmod(f, 16)
        if db & 1: tb ^= 1
        a = aRING + 4*(f % 16); d = ACC + 4*(2*db + tb); h = HB[ks & 1] + 4*tb
        mfs.append(f'{MF} v[{d}:{d+3}], a[{a}:{a+3}], v[{h}:{h+3}], ' + (f'v[{d}:{d+3}]' if ks else '0'))
    emit(mfs, gaps)
    stamp()
    def qk(cb, kb, ks, dst, c):
        d = dst + 8*cb + 4*kb; q = Q + 16*cb + 4*ks; a = aK + 16*kb + 4*ks
        return f'{MF} v[{d}:{d+3}], a[{a}:{a+3}], v[{q}:{q+3}], ' + (f'v[{d}:{d+3}]' if ks else c)
    def rowmax(src, m, t):
        o = [f'v_max3_f32 v{m}, v{src}, v{src+1}, v{src+2}', f'v_max3_f32 v{m}, v{m}, v{src+3}, v{src+4}',
             f'v_max3_f32 v{m}, v{m}, v{src+5}, v{src+6}', f'v_max_f32 v{m}, v{m}, v{src+7}']
        for sw in ('32', '16'):
            o += [f'v_mov_b32 v{t}, v{m}', 'v_nop', 'v_nop', f'v_permlane{sw}_swap_b32 v{m}, v{t}', f'v_max_f32 v{m}, v{m}, v{t}']
        return o
    def initnm(cbs):
        per = []
        for n, cb in enumerate(cbs):
            src = S[0] + 8*cb; nm = NM + 4*cb; m = vMX + 2*n
            o = [x for x in rowmax(src, m, m+1)]
            o.append(f'v_add_f32 v{m}, s{sMRG}, v{m}')
            o += [f'v_sub_f32 v{nm+i}, 0, v{m}' for i in range(4)]
            o += [f'v_sub_f32 v{src+i}, v{src+i}, v{m}' for i in range(8)]
            per.append(o)
        out = []; skip = False
        for a, b in zip(*per):
            if a == 'v_nop':
                if not skip: out.append(a)
                skip = True; continue
            skip = False
            out += [a, b]
        return out
    for it in h0[36:]: k(it)
    k.wait(lg0=True)
    k('s_nop 0')
    mfs = [qk(cb, kb, ks, S[0], '0') for cb in range(4) for kb in range(2) for ks in range(4)]
    gaps = [[] for _ in range(32)]
    pour(gaps, qhead(1), 0, 14)
    kr = kreads(3, 'K1_')
    for i in range(8): gaps[24 + i].append(kr[i])
    misc = [f'v_accvgpr_read_b32 v{vVA}, a{aPARK+4}', f'v_accvgpr_read_b32 v{vT0}, a{aPARK+6}']
    misc += [f'v_xor_b32 v{vVA+i}, {i*32}, v{vVA}' for i in range(1, 8)]
    misc += [f'v_accvgpr_write_b32 a{aONE+i}, v{vT0}' for i in range(4)]
    pour(gaps, misc + initnm((0, 1)), 15, 31)
    emit(mfs, gaps)
    dm = kvdma(4) + kvdma(5)
    zero = [f'v_mov_b32 v{P[1]+i}, 0' for i in range(16)] + [f'v_mov_b32 v{L[1]+i}, 0' for i in range(16)]
    for it in dm:
        k.item(it)
        if not isinstance(it, str):
            for z in zero[:4]: k(z)
            zero = zero[4:]
    for it in initnm((2, 3)): k(it)
    if PF: k(f'v_lshlrev_b32 v1, 5, v0')
    k(f's_mov_b32 s{sKO}, {7*8192}')
    k(f's_add_u32 s{sMB}, s{sW4K}, 0x10000')
    for i in range(4): k(f'v_xor_b32 v{vKA+i}, 0x10000, v{vKA+i}')
    k.wait(vm=['S1'], lg0=True)
    k('s_barrier')
    stamp()
    def vreads(u):
        return [('ds', f'ds_read_b64_tr_b16 a[{aV+4*db+2*j}:{aV+4*db+2*j+1}], v{vVA+db} offset:{u*16384 + j*8192}', f'V{db}') for db in range(8) for j in range(2)]
    def pv(db, cb, p):
        a = aV + 4*db; d = 16*db + 4*cb; b = P[p] + 4*cb
        return f'{MF} a[{d}:{d+3}], a[{a}:{a+3}], v[{b}:{b+3}], a[{d}:{d+3}]'
    def lsum(cb, p):
        return f'{MF} v[{L[p]+4*cb}:{L[p]+4*cb+3}], a[{aONE}:{aONE+3}], v[{P[p]+4*cb}:{P[p]+4*cb+3}], v[{L[p^1]+4*cb}:{L[p^1]+4*cb+3}]'
    if opt.get('align'): k('.p2align 3' if opt['align'] == 1 else f'.p2align {opt["align"]}')
    k(f'LOOP_{name}:')
    extras = opt.get('extras', {1: 'd', 2: 'm', 3: 'd', 5: 'd', 6: 'm', 7: 'd', 10: 'm', 14: 'm'})
    tailm = opt.get('tailm', [])
    for u in range(4):
        p = u & 1
        k.lq = []; k.vq = []
        ds = vreads(u) + kreads(u, 'K')
        dms = [('vm', f'buffer_load_dwordx4 v{vKV0}, s[{SK}:{SK+3}], s{sKO} offen lds', None),
               ('vm', f'buffer_load_dwordx4 v{vKV1}, s[{SK}:{SK+3}], s{sKO} offen offset:1024 lds', None),
               ('vm', f'buffer_load_dwordx4 v{vVV0}, s[{SV}:{SV+3}], s{sKO} offen offset:2048 lds', None),
               ('vm', f'buffer_load_dwordx4 v{vVV1}, s[{SV}:{SV+3}], s{sKO} offen offset:3072 lds', None)]
        gaps = [[] for _ in range(68)]
        g = 0; lpos = []; dmg = []; kpos = []
        for i in range(16):
            for x in extras.get(i, ''):
                if x == 'd': gaps[g] += ds[:2]; ds = ds[2:]
                elif x == 'm': gaps[g].append(dms.pop(0)); dmg.append(g)
                g += 1
            a = vE + 2*(i % 2); src = S[p] + 2*i
            gaps[g].append(f'v_exp_f32 v{a}, v{src}')
            gaps[g+1].append(f'v_exp_f32 v{a+1}, v{src+1}')
            if len(ds) <= 8: kpos.append(g+2)
            gaps[g+2] += [ds.pop(0), f'v_cvt_pk_bf16_f32 v{P[p]+i}, v{a}, v{a+1}']
            g += 3
            if i % 4 == 3: lpos.append(g + 1)
        for gg in tailm: gaps[gg].append(dms.pop(0)); dmg.append(gg)
        assert not ds and not dms
        mf = [qk(cb, kb, ks, S[p^1], f'v[{NM+4*cb}:{NM+4*cb+3}]') for cb in range(4) for kb in range(2) for ks in range(4)]
        mf += [pv(db, cb if db % 2 == 0 else 3 - cb, p^1) for db in range(8) for cb in range(4)]
        for cb, lp in enumerate(lpos): mf.insert(lp, lsum(cb, p))
        for i in range(8):
            last = max(n for n, m in enumerate(mf) if f', a[{aK+4*i}:{aK+4*i+3}],' in m)
            assert kpos[i] >= last, (i, kpos[i], last)
        pvs = [n for n, m in enumerate(mf) if m.startswith(f'{MF} a[')]
        gaps[pvs[0]-1].append(('wait', dict(lg=['V0', 'V1', 'V2', 'V3'])))
        gaps[pvs[16]-1].append(('wait', dict(lg=['V4', 'V5', 'V6', 'V7'])))
        if u == 2: gaps[dmg[0]-3].append(f's_xor_b32 s{sMB}, s{sMB}, 0x10000')
        gaps[dmg[0]-2].append(f's_add_u32 m0, s{sMB}, {((u+2)&3)*16384}')
        gaps[dmg[0]-1].append(f's_add_u32 s{sKO}, s{sKO}, 8192')
        e = lpos[3]
        gaps[g].append(f'v_max3_f32 v{vMX}, v{L[p]}, v{L[p]+4}, v{L[p]+8}')
        cg = opt.get('chk', 65)
        gaps[cg] += [f'v_max_f32 v{vMX}, v{vMX}, v{L[p]+12}', f'v_cmp_lt_f32 vcc, s{sTHR}, v{vMX}']
        if u == 3:
            tog = [f'v_xor_b32 v{vVA+i}, 0x10000, v{vVA+i}' for i in range(8)] + [f'v_xor_b32 v{vKA+i}, 0x10000, v{vKA+i}' for i in range(4)]
            pour(gaps, tog, g + 1, 66)
            gaps[66].append(f's_cmp_lt_u32 s{sKO}, {(64+7)*8192}')
        bg = opt.get('bar', 63)
        nb4 = sum(1 for x in dmg if x < bg - 1)
        if PF:
            nb4 += 1
            if u == 0:
                gaps[59].append('buffer_load_dword v2, v1, s[52:55], s56 offen')
                gaps[60].append('s_add_u32 s56, s56, 0x80000')
        gaps[bg-1].append(f's_waitcnt vmcnt({12+nb4}) lgkmcnt(0)' if p else 's_waitcnt lgkmcnt(0)')
        if p: gaps[bg].append('s_barrier')
        gaps[67] += [f's_cbranch_vccnz SLOW{u}_{name}', f'BACK{u}_{name}:']
        if u == 3: gaps[67].append(f's_cbranch_scc1 LOOP_{name}')
        if opt.get('verbose'): print('period', u, ''.join(str(gload(x)) for x in gaps), lpos)
        emit(mf, gaps)
    stamp()
    k.lq = []; k.vq = []
    for it in vreads(0): k.item(it)
    for cb in range(4): k(f'v_rcp_f32 v{vE+cb}, v{L[1]+4*cb}')
    k(f'''s_lshl_b32 s{sOO}, s{sRB}, 2
    s_add_u32 s{sOO}, s{sOO}, s{sW}
    s_lshl_b32 s{sOO}, s{sOO}, 18
    s_lshl_b32 s{sT0}, s{sG}, 13
    s_add_u32 s{sOO}, s{sOO}, s{sT0}
    s_add_u32 s{sOO}, s{sOO}, {OBUF}
    s_add_u32 s{sOO+1}, s{sOO}, 0x20000
    s_add_u32 s{sOO+2}, s{sOO}, 0x1000
    s_add_u32 s{sOO+3}, s{sOO}, 0x21000''')
    cnt = [0]
    def oepi(D, cb):
        o = []
        t = 16 + 12*(cnt[0] % 5); cnt[0] += 1
        for i in range(8): o.append(f'v_accvgpr_read_b32 v{t+i}, a{16*(2*D + i//4) + 4*cb + i%4}')
        for i in range(8): o.append(f'v_mul_f32 v{t+i}, v{t+i}, v{vE+cb}')
        for i in range(4): o.append(f'v_cvt_pk_bf16_f32 v{t+8+i}, v{t+2*i}, v{t+2*i+1}')
        o.append(f'buffer_store_dwordx4 v[{t+8}:{t+11}], v{vL16}, s[{SWS}:{SWS+3}], s{sOO+cb} offen offset:{D*1024} {opt.get("st", "")}')
        return o
    st = []
    for D in range(4):
        for cb in range(4): st += oepi(D, cb)
    pos = 0
    for db in range(8):
        k.wait(lg=[f'V{db}'])
        for cb in range(4):
            k(pv(db, cb, 1))
            if db >= 3:
                for it in st[pos:pos+2]: k(it)
                pos += 2
    for it in st[pos:]: k(it)
    stamp()
    if stamps:
        k('s_waitcnt vmcnt(0)')
        stamp()
        k('s_memrealtime s[92:93]')
        k('s_waitcnt lgkmcnt(0)')
        k(f's_sub_u32 s{60+2*nst[0]}, s92, s90'); nst[0] += 1
        k(f's_lshl_b32 s{sT0}, s2, 2')
        k(f's_add_u32 s{sT0}, s{sT0}, s{sW}')
        k(f's_lshl_b32 s{sT0}, s{sT0}, 5')
        k(f's_add_u32 s{sT0}, s{sT0}, {STAMP}')
        k('v_mov_b32 v2, 0')
        for i in range(nst[0]):
            k(f'v_mov_b32 v1, s{60+2*i}')
            k(f'buffer_store_dword v1, v2, s[{SWS}:{SWS+3}], s{sT0} offen offset:{4*i}')
    k(f'END_{name}:')
    k('s_endpgm')
    for u in range(4):
        k(f'SLOW{u}_{name}:')
        k(f's_call_b64 s[{sRET}:{sRET+1}], FIX{u&1}_{name}')
        k(f's_branch BACK{u}_{name}')
    for p in range(2):
        k(f'FIX{p}_{name}:')
        k('s_nop 7')
        for cb in range(4):
            src = S[p] + 8*cb; nx = S[p^1] + 8*cb; nm = NM + 4*cb; lo = L[p^1] + 4*cb
            k(f'v_log_f32 v{vMX+2}, v{lo}')
            for it in rowmax(src, vMX, vMX+1): k(it)
            k(f'v_max_f32 v{vMX}, v{vMX}, v{vMX+2}')
            k(f'v_add_f32 v{vMX}, s{sMRG}, v{vMX}')
            k(f'v_max_f32 v{vMX}, 0, v{vMX}')
            k(f'v_exp_f32 v{vMX+1}, -v{vMX}')
            for i in range(4): k(f'v_sub_f32 v{nm+i}, v{nm+i}, v{vMX}')
            for i in range(8):
                k(f'v_sub_f32 v{src+i}, v{src+i}, v{vMX}')
                k(f'v_sub_f32 v{nx+i}, v{nx+i}, v{vMX}')
            k(f'v_mul_f32 v{lo}, v{lo}, v{vMX+1}')
            for db in range(8):
                for i in range(4):
                    k(f'v_accvgpr_read_b32 v{vE}, a{16*db+4*cb+i}')
                    k(f'v_mul_f32 v{vE}, v{vE}, v{vMX+1}')
                    k(f'v_accvgpr_write_b32 a{16*db+4*cb+i}, v{vE}')
            for i in range(4):
                k(f'v_exp_f32 v{vE}, v{src+2*i}')
                k(f'v_exp_f32 v{vE+1}, v{src+2*i+1}')
                k('s_nop 0')
                k(f'v_cvt_pk_bf16_f32 v{P[p]+4*cb+i}, v{vE}, v{vE+1}')
            k('s_nop 1')
            k(lsum(cb, p))
        k('s_nop 7')
        k(f's_setpc_b64 s[{sRET}:{sRET+1}]')
    return k

if __name__ == '__main__':
    import sys, chk
    k = build(stamps=True, opt=dict(verbose=True))
    t = assemble_file([k])
    open('k2.s', 'w').write(t)
    e = chk.check(t) + chk.check_waits(t, k.name) + chk.check_waits(t, k.name, forced=[f'SLOW{u}_{k.name}' for u in range(4)])
    print('\n'.join(e[:40])); print(len(e), 'problems')
```

```python
class Kern:
    def __init__(self, name, grid, block, lds=0, vgpr=256, agpr=0, sgpr=102):
        self.name = name; self.grid = grid; self.block = block; self.lds = lds
        self.vgpr = vgpr; self.agpr = agpr; self.sgpr = sgpr
        self.lines = []
        self._lab = 0
    def __call__(self, s):
        for l in s.split('\n'):
            l = l.strip()
            if l:
                self.lines.append(l if l.endswith(':') else '    ' + l)
    def label(self, base='L'):
        self._lab += 1
        return f'{base}_{self.name}_{self._lab}'
    def text(self):
        return (f'.globl {self.name}\n.p2align 8\n.type {self.name},@function\n{self.name}:\n' +
                '\n'.join(self.lines) + '\n')
    def desc(self):
        acc = (self.vgpr + 3) // 4 * 4
        nfv = acc + self.agpr if self.agpr else self.vgpr
        return f'''.p2align 6
.amdhsa_kernel {self.name}
  .amdhsa_next_free_vgpr {nfv}
  .amdhsa_next_free_sgpr {self.sgpr}
  .amdhsa_accum_offset {acc}
  .amdhsa_group_segment_fixed_size 0
  .amdhsa_kernarg_size 112
  .amdhsa_user_sgpr_count 2
  .amdhsa_user_sgpr_kernarg_segment_ptr 1
  .amdhsa_system_sgpr_workgroup_id_x 1
  .amdhsa_float_denorm_mode_32 3
  .amdhsa_float_denorm_mode_16_64 3
.end_amdhsa_kernel
'''

def assemble_file(kernels, launches=None, header=''):
    if launches is None: launches = kernels
    out = []
    if header: out.append(header.rstrip('\n'))
    for k in launches:
        out.append(f'; @launch kernel={k.name} grid=({k.grid},1,1) block=({k.block},1,1) lds={k.lds}')
    out.append('.amdgcn_target "amdgcn-amd-amdhsa--gfx950"')
    out.append('.text')
    for k in kernels: out.append(k.text())
    out.append('.section .rodata,"a"')
    for k in kernels: out.append(k.desc())
    return '\n'.join(out)

def srd(k, d, ptr, nbytes):
    k(f's_mov_b32 s{d}, s{ptr}')
    k(f's_and_b32 s{d+1}, s{ptr+1}, 0xffff')
    k(f's_mov_b32 s{d+2}, {nbytes}')
    k(f's_mov_b32 s{d+3}, 0x00020000')

class E(Kern):
    def __init__(self, *a, **kw):
        super().__init__(*a, **kw)
        self.vq = []; self.lq = []
    def ds(self, text, tag=None):
        self(text); self.lq.append(tag)
    def vm(self, text, tag=None):
        self(text); self.vq.append(tag)
    def wait(self, vm=(), lg=(), vm0=False, lg0=False, force=False):
        parts = []
        def cnt(q, tags, all_, mx):
            if all_: return 0 if (q or force) else None
            idx = [i for i, t in enumerate(q) if t in tags]
            if not idx: return None
            return min(len(q) - 1 - max(idx), mx)
        a = cnt(self.vq, set(vm), vm0, 63)
        if a is not None:
            parts.append(f'vmcnt({a})'); self.vq = self.vq[len(self.vq) - a:] if a else []
        b = cnt(self.lq, set(lg), lg0, 15)
        if b is not None:
            parts.append(f'lgkmcnt({b})'); self.lq = self.lq[len(self.lq) - b:] if b else []
        if parts: self('s_waitcnt ' + ' '.join(parts))
        return bool(parts)
    def item(self, it):
        if isinstance(it, str): self(it)
        elif callable(it): it()
        elif it[0] == 'ds': self.ds(it[1], it[2])
        elif it[0] == 'vm': self.vm(it[1], it[2])
        elif it[0] == 'wait': self.wait(**it[1])
        else: raise ValueError(it)

def cost(it):
    if isinstance(it, str):
        mn = it.split()[0]
        if mn.endswith(':'): return 0
        if mn in ('v_exp_f32', 'v_rcp_f32', 'v_rsq_f32', 'v_log_f32'): return 8
        return 4
    if it[0] == 'vm': return 12
    return 4

def flow(gaps, stream, g0, g1, hard=24):
    base = [sum(cost(i) for i in g) for g in gaps]
    tot = sum(cost(i) for i in stream)
    lo, hi = 0.0, 1000.0
    for _ in range(40):
        L = (lo + hi) / 2
        if sum(max(0, L - base[g]) for g in range(g0, g1 + 1)) >= tot: hi = L
        else: lo = L
    L = hi
    best = None
    for H in range(hard, 400, 4):
        for bias in (0.5, 0.25, 0.0, -0.5, -1, -2, -4):
            out = [[] for _ in gaps]; i = 0; cum = 0; done = 0
            for g in range(g0, g1 + 1):
                cum += max(0, L - base[g]); load = base[g]
                while i < len(stream) and load + cost(stream[i]) <= H and (done + bias * cost(stream[i]) <= cum + 1e-6):
                    out[g].append(stream[i]); load += cost(stream[i]); done += cost(stream[i]); i += 1
            if i == len(stream): return out, (round(L, 1), H)
    raise ValueError('does not fit')

def vr(a, n=1): return f'v{a}' if n == 1 else f'v[{a}:{a+n-1}]'
def ar(a, n=1): return f'a{a}' if n == 1 else f'a[{a}:{a+n-1}]'
def sr(a, n=1): return f's{a}' if n == 1 else f's[{a}:{a+n-1}]'

def txt(it): return it if isinstance(it, str) else (it[1] if it[0] != 'wait' else 's_waitcnt')
def klass(it):
    t = txt(it)
    if t.endswith(':') or t.startswith('s_'): return 0
    if t.startswith(('ds_', 'buffer_', 'global_')): return 1
    return 2
def units(it):
    t = txt(it); mn = t.split()[0]
    if klass(it) == 0: return 0
    if mn in ('v_exp_f32', 'v_rcp_f32', 'v_rsq_f32', 'v_log_f32') or mn.startswith(('buffer_', 'global_')): return 2
    return 1
def gload(g):
    ns = sum(1 for i in g if klass(i) == 0 and not txt(i).endswith(':'))
    return sum(units(i) for i in g) + max(0, ns - 1)
def gsort(g):
    return sorted(g, key=klass)
def pour(gaps, stream, g0, g1, cap=2):
    tot = sum(units(i) for i in stream)
    base = [gload(g) for g in gaps]
    lo, hi = 0.0, 100.0
    for _ in range(40):
        L = (lo + hi) / 2
        if sum(max(0, L - base[g]) for g in range(g0, g1 + 1)) >= tot: hi = L
        else: lo = L
    L = hi
    for H in range(cap, 60):
        for bias in (0.5, 0.25, 0.0, -0.5, -1, -2, -4):
            out = [[] for _ in gaps]; i = 0; cum = 0; done = 0
            for g in range(g0, g1 + 1):
                cum += max(0, L - base[g])
                while i < len(stream):
                    j = i
                    while j < len(stream) - 1 and units(stream[j]) == 0: j += 1
                    grp = stream[i:j+1]
                    if len(grp) > 1 and out[g]: break
                    u = units(stream[j])
                    if gload(gaps[g] + out[g] + grp) <= H and done + bias * u <= cum + 1e-6:
                        out[g] += grp; done += u; i = j + 1
                    else: break
            if i == len(stream):
                for g in range(g0, g1 + 1): gaps[g] += out[g]
                return (round(L, 2), H)
    raise ValueError('does not fit')

class Stamps:
    def __init__(self, k, on, slot, base=60):
        self.k = k; self.on = on; self.slot = slot; self.n = 0; self.base = base
    def begin(self):
        if self.on: self.k('s_memrealtime s[90:91]'); self.mark()
    def mark(self):
        if self.on:
            self.k(f's_memtime s[{self.base + 2*self.n}:{self.base + 2*self.n + 1}]'); self.n += 1
    def end(self, sW, SWS, nw=4):
        if not self.on: return
        from layout import STAMP
        k = self.k
        self.mark(); k('s_waitcnt vmcnt(0)'); self.mark()
        k('s_memrealtime s[92:93]')
        k('s_waitcnt lgkmcnt(0)')
        k(f's_mul_i32 s94, s2, {nw}')
        k(f's_add_u32 s94, s94, s{sW}')
        k('s_lshl_b32 s94, s94, 6')
        k(f's_add_u32 s94, s94, {STAMP + self.slot*0x80000}')
        k('v_mov_b32 v2, 0')
        for i, src in enumerate(['s90', 's92', str(self.n)] + [f's{self.base + 2*i}' for i in range(self.n)]):
            k(f'v_mov_b32 v1, {src}')
            k(f'buffer_store_dword v1, v2, s[{SWS}:{SWS+3}], s94 offen offset:{4*i}')

def pour2(gaps, stream, g0, g1):
    tot = sum(units(i) for i in stream)
    free = sum(max(0, 2 - gload(gaps[g])) for g in range(g0, g1 + 1))
    n = g1 - g0 + 1
    if tot <= free - n//8:
        try: return pour(gaps, stream, g0, g1, cap=2)
        except ValueError: pass
    for over in range(max(0, tot - free), 4000):
        out = [[] for _ in gaps]; i = 0; credit = 0.5
        for g in range(g0, g1 + 1):
            credit += over / n
            while i < len(stream):
                j = i
                while j < len(stream) - 1 and units(stream[j]) == 0: j += 1
                grp = stream[i:j+1]
                if len(grp) > 1 and out[g]: break
                a = max(2, gload(gaps[g] + out[g])); b = max(2, gload(gaps[g] + out[g] + grp))
                if b - a <= credit:
                    credit -= b - a; out[g] += grp; i = j + 1
                else: break
        if i == len(stream):
            for g in range(g0, g1 + 1): gaps[g] += out[g]
            return over
    raise ValueError('does not fit')

def code_prefetch(k, lab, nb, sIdx, s0, vA, vD, back=False):
    pc = k.label('PC')
    k(f'''s_min_u32 s{s0}, s{sIdx}, {nb - 1}
    s_lshl_b32 s{s0}, s{s0}, 13
    v_lshlrev_b32 v{vA}, 7, v0
    v_add_u32 v{vA}, s{s0}, v{vA}
    s_getpc_b64 s[{s0}:{s0+1}]
    {pc}:''')
    if back:
        k(f's_sub_u32 s{s0}, s{s0}, {pc}-{lab}')
        k(f's_subb_u32 s{s0+1}, s{s0+1}, 0')
    else:
        k(f's_add_u32 s{s0}, s{s0}, {lab}-{pc}')
        k(f's_addc_u32 s{s0+1}, s{s0+1}, 0')
    k.vm(f'global_load_dword v{vD}, v{vA}, s[{s0}:{s0+1}]')
```

```python
import math, struct
from asmlib import *
from layout import *
def f2u(x): return struct.unpack('<I', struct.pack('<f', x))[0]
def build(name='k1_kernel', stamps=False, opt=None):
    opt = opt or {}
    k = E(name, 256, 256, lds=1024, vgpr=128)
    sW, sT0, sT1 = 24, 25, 26
    STP = Stamps(k, stamps, 0)
    STP.begin()
    k(f'''s_cmp_ge_u32 s2, 256
    s_cbranch_scc1 END_{name}
    s_load_dwordx2 s[40:41], s[0:1], 0
    s_load_dwordx4 s[44:47], s[0:1], 72
    s_load_dwordx2 s[42:43], s[0:1], 104
    s_load_dwordx4 s[48:51], s[0:1], 8
    s_load_dwordx2 s[52:53], s[0:1], 24
    v_lshrrev_b32 v1, 6, v0
    v_and_b32 v0, 63, v0
    v_readfirstlane_b32 s{sW}, v1
    v_lshrrev_b32 v2, 3, v0
    v_and_b32 v3, 7, v0
    s_cmp_eq_u32 s{sW}, 3
    s_cbranch_scc1 LN_{name}
    s_and_b32 s{sT0}, s2, 3
    s_lshr_b32 s{sT1}, s2, 2
    s_mul_i32 s27, s{sT0}, 144
    s_mul_i32 s28, s{sW}, 48
    s_add_u32 s27, s27, s28
    s_lshl_b32 s28, s27, 1
    s_mul_i32 s27, s27, 6912
    s_lshl_b32 s29, s{sT1}, 7
    s_add_u32 s27, s27, s29
    v_mul_u32_u24 v4, 6912, v2
    v_lshl_add_u32 v4, v3, 4, v4
    v_lshlrev_b32 v5, 1, v2
    s_waitcnt lgkmcnt(0)''')
    srd(k, 8, 44, 1152); srd(k, 12, 46, 576*6912); srd(k, 16, 42, WS_BYTES)
    pfw = []
    if opt.get('pfw', 0):
        srd(k, 20, 52, 576*8192)
        k(f'''s_lshr_b32 s30, s2, 3
        s_mul_i32 s30, s30, 18
        s_mul_i32 s31, s{sW}, 6
        s_add_u32 s30, s30, s31
        s_lshl_b32 s30, s30, 13
        s_and_b32 s31, s2, 7
        s_lshl_b32 s31, s31, 10
        s_add_u32 s30, s30, s31
        v_lshlrev_b32 v60, 13, v2
        v_lshl_add_u32 v60, v3, 7, v60''')
        pfw = ['buffer_load_dword v61, v60, s[20:23], s30 offen']
    k(f's_cmp_lt_u32 s2, 216')
    k(f's_cbranch_scc1 GV_{name}')
    for x in pfw: k(x)
    k('s_endpgm')
    k(f'GV_{name}:')
    for n in range(6): k.vm(f'buffer_load_ushort v{8+n}, v5, s[8:11], s28 offen offset:{16*n}', 'c')
    for n in range(6):
        k.vm(f'buffer_load_dwordx4 v[{32+4*n}:{35+4*n}], v4, s[12:15], s27 offen', f'w{n}')
        if n < 5: k(f's_add_u32 s27, s27, {8*6912}')
    for x in pfw: k.vm(x)
    k(f'''s_mul_i32 s27, s{sT0}, {3456*4}
    s_lshl_b32 s29, s{sT1}, 8
    s_add_u32 s27, s27, s29
    s_add_u32 s27, s27, {MODP}
    v_lshrrev_b32 v6, 4, v0
    v_lshlrev_b32 v6, 3, v6
    v_lshl_add_u32 v6, v3, 5, v6
    v_lshl_add_u32 v6, v1, 8, v6
    v_lshlrev_b32 v7, 2, v0''')
    for i in range(8): k(f'v_mov_b32 v{20+i}, 0')
    k.wait(vm=['c'])
    for n in range(6): k(f'v_lshlrev_b32 v{8+n}, 16, v{8+n}')
    for n in range(6): k(f'v_mul_f32 v{14+n}, {f2u(-math.log2(math.e))}, v{8+n}')
    for n in range(6): k(f'v_exp_f32 v{14+n}, v{14+n}')
    for n in range(6): k(f'v_add_f32 v{14+n}, 1.0, v{14+n}')
    for n in range(6): k(f'v_rcp_f32 v{14+n}, v{14+n}')
    for n in range(6): k(f'v_mul_f32 v{8+n}, v{8+n}, v{14+n}')
    for n in range(6): k(f'v_cvt_pk_bf16_f32 v{8+n}, v{8+n}, 0')
    for n in range(6): k(f'v_lshlrev_b32 v{14+n}, 16, v{8+n}')
    for n in range(6):
        k.wait(vm=[f'w{n}'])
        if opt.get('dot2', 1):
            for i in range(4):
                k(f'v_dot2c_f32_bf16 v{20+2*i}, v{32+4*n+i}, v{8+n}')
                k(f'v_dot2c_f32_bf16 v{21+2*i}, v{32+4*n+i}, v{14+n}')
        else:
            for i in range(4):
                k(f'v_lshlrev_b32 v28, 16, v{32+4*n+i}')
                k(f'v_and_b32 v29, 0xffff0000, v{32+4*n+i}')
                k(f'v_fmac_f32 v{20+2*i}, v28, v{14+n}')
                k(f'v_fmac_f32 v{21+2*i}, v29, v{14+n}')
    k('s_nop 3')
    for i in range(4): k(f'v_permlane32_swap_b32 v{20+i}, v{24+i}')
    for i in range(4): k(f'v_add_f32 v{20+i}, v{20+i}, v{24+i}')
    k('s_nop 0')
    for i in range(2): k(f'v_permlane16_swap_b32 v{20+i}, v{22+i}')
    for i in range(2): k(f'v_add_f32 v{20+i}, v{20+i}, v{22+i}')
    k('s_nop 0')
    for i in range(2): k(f'v_add_f32_dpp v{20+i}, v{20+i}, v{20+i} row_ror:8 row_mask:0xf bank_mask:0xf')
    k.ds('ds_write_b64 v6, v[20:21]')
    k.wait(lg0=True)
    k(f'''s_barrier
    s_cmp_lg_u32 s{sW}, 0
    s_cbranch_scc1 END_{name}''')
    for w in range(3): k.ds(f'ds_read_b32 v{20+w}, v7 offset:{256*w}')
    k.wait(lg0=True)
    k('''v_add_f32 v20, v20, v21
    v_add_f32 v20, v20, v22
    buffer_store_dword v20, v7, s[16:19], s27 offen''')
    STP.end(sW, 16); STP.n = 1
    k(f'END_{name}:')
    k('s_endpgm')
    k(f'LN_{name}:')
    k.vq = []; k.lq = []
    k(f'''v_mul_u32_u24 v4, 1152, v3
    v_lshl_add_u32 v4, v2, 4, v4
    s_mul_i32 s27, s2, {8*1152}
    s_waitcnt lgkmcnt(0)''')
    srd(k, 8, 40, 2048*1152); srd(k, 16, 42, WS_BYTES)
    for n in range(9): k.vm(f'buffer_load_dwordx4 v[{8+4*n}:{11+4*n}], v4, s[8:11], s27 offen offset:{128*n}', f'x{n}')
    k(f'''s_lshr_b32 s28, s2, 1
    s_mul_i32 s28, s28, 18432
    s_and_b32 s29, s2, 1
    s_lshl_b32 s29, s29, 7
    s_add_u32 s28, s28, s29
    v_lshlrev_b32 v5, 4, v3
    v_lshl_add_u32 v5, v2, 8, v5''')
    if XN: k(f's_add_u32 s28, s28, {XN}')
    k('v_lshlrev_b32 v120, 7, v0')
    if opt.get('pfkv', 0):
        k(f'''s_bitcmp1_b32 s2, 4
        s_cselect_b32 s20, s50, s48
        s_cselect_b32 s21, s51, s49
        s_and_b32 s21, s21, 0xffff
        s_mov_b32 s22, {16*524288}
        s_mov_b32 s23, 0x00020000
        s_and_b32 s30, s2, 7
        s_lshl_b32 s30, s30, 1
        s_bfe_u32 s31, s2, 0x10003
        s_add_u32 s30, s30, s31
        s_lshl_b32 s30, s30, 19
        s_lshr_b32 s31, s2, 5
        s_lshl_b32 s31, s31, 13
        s_add_u32 s30, s30, s31''')
        k.vm('buffer_load_dword v121, v120, s[20:23], s30 offen')
    if opt.get('pfc'):
        lab, nb = opt['pfc']
        k(f'''s_lshr_b32 s30, s2, 3
        s_min_u32 s30, s30, {nb - 1}
        s_lshl_b32 s30, s30, 13
        v_add_u32 v120, s30, v120
        s_getpc_b64 s[32:33]
        PC_{name}:
        s_add_u32 s32, s32, {lab}-PC_{name}
        s_addc_u32 s33, s33, 0''')
        k.vm('global_load_dword v122, v120, s[32:33]')
    X = 48
    def allred(r, t):
        k('s_nop 1')
        k(f'v_add_f32_dpp v{r}, v{r}, v{r} row_ror:8 row_mask:0xf bank_mask:0xf')
        for sw in ('16', '32'):
            k(f'v_mov_b32 v{t}, v{r}'); k('s_nop 1')
            k(f'v_permlane{sw}_swap_b32 v{r}, v{t}')
            k(f'v_add_f32 v{r}, v{r}, v{t}')
    for n in range(9):
        k.wait(vm=[f'x{n}'])
        for i in range(4):
            k(f'v_lshlrev_b32 v{X+8*n+2*i}, 16, v{8+4*n+i}')
            k(f'v_and_b32 v{X+8*n+2*i+1}, 0xffff0000, v{8+4*n+i}')
        for i in range(2):
            a = X + 8*n + 4*i
            if n == 0: k(f'v_pk_add_f32 v[{44+2*i}:{45+2*i}], v[{a}:{a+1}], v[{a+2}:{a+3}]')
            else:
                k(f'v_pk_add_f32 v[44:45], v[44:45], v[{a}:{a+1}]')
                k(f'v_pk_add_f32 v[46:47], v[46:47], v[{a+2}:{a+3}]')
    k('v_pk_add_f32 v[44:45], v[44:45], v[46:47]')
    k('v_add_f32 v44, v44, v45')
    allred(44, 45)
    k(f'v_mul_f32 v6, {f2u(-1/576)}, v44')
    for i in range(36):
        a = X + 2*i; d = 44 + 2*(i & 1)
        k(f'v_pk_add_f32 v[{a}:{a+1}], v[{a}:{a+1}], v[6:7] op_sel_hi:[1,0]')
        if i >= 1:
            a -= 2
            if i < 3: k(f'v_pk_mul_f32 v[{d}:{d+1}], v[{a}:{a+1}], v[{a}:{a+1}]')
            else: k(f'v_pk_fma_f32 v[{d}:{d+1}], v[{a}:{a+1}], v[{a}:{a+1}], v[{d}:{d+1}]')
    a = X + 70
    k(f'v_pk_fma_f32 v[44:45], v[{a}:{a+1}], v[{a}:{a+1}], v[44:45]')
    k('v_pk_add_f32 v[44:45], v[44:45], v[46:47]')
    k('v_add_f32 v44, v44, v45')
    allred(44, 45)
    k(f'v_mov_b32 v45, {f2u(1e-5)}')
    k(f'v_fmac_f32 v45, {f2u(1/576)}, v44')
    k('v_rsq_f32 v6, v45')
    k('s_barrier')
    for n in range(9):
        for i in range(4):
            a = X + 8*n + 2*i
            k(f'v_pk_mul_f32 v[{a}:{a+1}], v[{a}:{a+1}], v[6:7] op_sel_hi:[1,0]')
        for i in range(4):
            a = X + 8*n + 2*i
            k(f'v_cvt_pk_f16_f32 v{8+4*n+i}, v{a}, v{a+1}')
        k(f'buffer_store_dwordx4 v[{8+4*n}:{11+4*n}], v5, s[16:19], s28 offen offset:{(n&1)*2048}')
        if n & 1: k('s_add_u32 s28, s28, 4096')
    STP.end(sW, 16)
    k('s_endpgm')
    return k
if __name__ == '__main__':
    import chk
    k = build(); t = assemble_file([k]); open('k1.s', 'w').write(t)
    e = chk.check(t) + chk.check_waits(t, k.name) + chk.check_waits(t, k.name, forced=[f'LN_{k.name}'])
    print('\n'.join(e[:40])); print(len(e), 'problems')
```

```python
import math, struct
from asmlib import *
from layout import *
def f2u(x): return struct.unpack('<I', struct.pack('<f', x))[0]
MF = 'v_mfma_f32_16x16x32_bf16'
MARGIN = 20.0
THR = 2.0 ** 30
SK, SV, SW, SWS = 8, 12, 16, 20
sW, sG, sRB, sKO, sMB, sT0, sT1, sTHR, sRET, sXO, sWO, sW4K, sMRG, sOO = 24, 25, 26, 27, 28, 29, 30, 31, 32, 34, 36, 37, 38, 48
sST, sLIM = 6, 3
vWA, vCS, vWV, vL16, vT0 = 1, 9, 10, 14, 15
vKV0, vKV1, vVV0, vVV1 = 10, 11, 12, 13
ACC = 16
S = [16, 48]; NM = 80; L = [96, 112]; P = [128, 144]; Q = 160
CSB = [224, 240]; HB = [144, 152]
vTM = 1
vKA, vVA, vE, vMX = 224, 228, 236, 244
aK, aV, aRING, aONE, aPARK = 128, 160, 192, 192, 160
TBL = 131072

def build(name='k2_kernel', stamps=False, opt=None):
    opt = opt or {}
    k = E(name, 256, 256, lds=131072 + 8192, vgpr=256, agpr=256)
    STP = Stamps(k, stamps, 1); stamp = STP.mark
    def emit(mfs, gaps):
        for m, g in zip(mfs, gaps):
            k(m)
            for it in gsort(g): k.item(it)
    k(f's_cmp_ge_u32 s2, 256')
    k(f's_cbranch_scc1 END_{name}')
    STP.begin()
    k('s_load_dwordx4 s[40:43], s[0:1], 8')
    k('s_load_dwordx2 s[44:45], s[0:1], 24')
    k('s_load_dwordx2 s[46:47], s[0:1], 104')
    PF = opt.get('pf', 1)
    k('s_load_dwordx2 s[4:5], s[0:1], 32')
    if PF:
        k('s_load_dwordx4 s[76:79], s[0:1], 48')
        k('s_load_dwordx2 s[80:81], s[0:1], 64')
    k(f'''v_lshrrev_b32 v{vT0}, 6, v0
    s_and_b32 s{sT0}, s2, 7
    v_readfirstlane_b32 s{sW}, v{vT0}
    s_lshr_b32 s{sT1}, s2, 3
    s_lshl_b32 s{sG}, s{sT0}, 1
    s_and_b32 s{sT0}, s{sT1}, 1
    s_or_b32 s{sG}, s{sG}, s{sT0}
    s_lshr_b32 s{sRB}, s{sT1}, 1
    v_lshlrev_b32 v16, 4, v0
    v_and_b32 v0, 63, v0
    v_lshlrev_b32 v{vL16}, 4, v0
    s_lshl_b32 s{sW4K}, s{sW}, 12''')
    k(f'''v_lshrrev_b32 v17, 5, v0
    v_and_b32 v18, 31, v0
    v_lshlrev_b32 v18, 4, v18
    v_lshlrev_b32 v19, 5, v17
    v_xor_b32 v18, v18, v19
    v_lshl_add_u32 v18, v17, 13, v18
    s_lshr_b32 s{sT0}, s{sW}, 1
    s_lshl_b32 s{sT0}, s{sT0}, 18
    s_and_b32 s{sT1}, s{sW}, 1
    s_lshl_b32 s{sT1}, s{sT1}, 15
    s_add_u32 s{sT0}, s{sT0}, s{sT1}
    v_add_u32 v{vWV}, s{sT0}, v18''')
    for i in range(1, 4):
        k(f'v_xor_b32 v18, {64*i}, v{vWV}')
        k(f'v_add_u32 v{vWV+i}, {(8*(i>>1) + 2*(i&1))*8192 - i*1024}, v18')
    k(f'''s_lshl_b32 s{sMB}, s{sW}, 13
    s_lshl_b32 s{sXO}, s{sRB}, 2
    s_add_u32 s{sXO}, s{sXO}, s{sW}
    s_mul_i32 s{sXO}, s{sXO}, 36864''')
    if XN: k(f's_add_u32 s{sXO}, s{sXO}, {XN}')
    k(f's_add_u32 s{sXO+1}, s{sXO}, 18432')
    k('s_waitcnt lgkmcnt(0)')
    k(f'''s_mov_b32 s{SWS}, s46
    s_and_b32 s{SWS+1}, s47, 0xffff
    s_mov_b32 s{SWS+2}, {WS_BYTES}
    s_mov_b32 s{SWS+3}, 0x00020000
    s_lshl_b32 s{sT0}, s{sG}, 9
    s_add_u32 s{SW}, s44, s{sT0}
    s_addc_u32 s{SW+1}, s45, 0
    s_and_b32 s{SW+1}, s{SW+1}, 0xffff
    s_sub_u32 s{SW+2}, {576*8192}, s{sT0}
    s_mov_b32 s{SW+3}, 0x00020000''')
    for p in range(4):
        k(f's_mov_b32 s{sT0}, {MODP + p*3456*4}')
        k.vm(f'buffer_load_dwordx4 v[{20+8*p}:{23+8*p}], v16, s[{SWS}:{SWS+3}], s{sT0} offen', 'mod')
        k.vm(f'buffer_load_dwordx4 v[{24+8*p}:{27+8*p}], v16, s[{SWS}:{SWS+3}], s{sT0} offen offset:2304', 'mod')
    R = lambda s: (s + 2) % 4
    def wdma(s):
        out = []
        for half in range(2):
            out.append(f's_add_u32 m0, s{sMB}, {R(s)*32768 + half*4096}')
            out.append(f's_mov_b32 s{sWO}, {(s*64 + half*16)*8192}')
            for i in range(4):
                out.append(('vm', f'buffer_load_dwordx4 v{vWV+i}, s[{SW}:{SW+3}], s{sWO} offen offset:{i*1024} lds', f'W{s}'))
        return out
    def xnload(ks):
        out = []
        for tb in range(2):
            if ks % 4 == 0 and ks: out.append(f's_add_u32 s{sXO+tb}, s{sXO+tb}, 4096')
            r = Q + 8*(ks % 8) + 4*tb
            out.append(('vm', f'buffer_load_dwordx4 v[{r}:{r+3}], v{vL16}, s[{SWS}:{SWS+3}], s{sXO+tb} offen offset:{(ks%4)*1024}', f'X{ks}'))
        return out
    NPRE = opt.get('npre', 2)
    for it in wdma(0) + xnload(0) + xnload(1): k.item(it)
    VOFF = 3*8192 + 2048
    k(f'''s_lshl_b32 s{sT0}, s{sG}, 19
    s_add_u32 s{SK}, s40, s{sT0}
    s_addc_u32 s{SK+1}, s41, 0
    s_and_b32 s{SK+1}, s{SK+1}, 0xffff
    s_mov_b32 s{SK+2}, 524288
    s_mov_b32 s{SK+3}, 0x00020000
    s_add_u32 s{SV}, s42, s{sT0}
    s_addc_u32 s{SV+1}, s43, 0
    s_sub_u32 s{SV}, s{SV}, {VOFF}
    s_subb_u32 s{SV+1}, s{SV+1}, 0
    s_and_b32 s{SV+1}, s{SV+1}, 0xffff
    s_mov_b32 s{SV+2}, {524288 + VOFF}
    s_mov_b32 s{SV+3}, 0x00020000
    s_mov_b32 s{sTHR}, {f2u(THR)}
    s_mov_b32 s{sMRG}, {f2u(MARGIN)}''')
    if PF:
        k(f'''s_mov_b32 s52, s4
        s_mov_b32 s53, s5
        s_mov_b32 s54, {4096*1152}''')
        for w in range(1, 4):
            k(f's_cmp_eq_u32 s{sW}, {w}')
            k(f's_cselect_b32 s52, s{74+2*w}, s52')
            k(f's_cselect_b32 s53, s{75+2*w}, s53')
            k(f's_cselect_b32 s54, {4608*1152}, s54')
        k(f'''s_and_b32 s53, s53, 0xffff
        s_mov_b32 s55, 0x00020000
        s_lshl_b32 s56, s2, 11
        s_mov_b32 s57, 0x80000''')
        if PF == 2:
            k(f'''s_and_b32 s{sT0}, s2, 7
            s_mul_i32 s{sT0}, s{sT0}, {512*1152}
            s_lshr_b32 s{sT1}, s2, 3
            s_lshl_b32 s{sT1}, s{sT1}, 11
            s_add_u32 s{sT0}, s{sT0}, s{sT1}
            s_cmp_eq_u32 s{sW}, 0
            s_cselect_b32 s56, s{sT0}, s56
            s_cselect_b32 s57, {36864 + 4096}, s57''')
    k(f'''v_lshrrev_b32 v17, 4, v0
    v_and_b32 v18, 15, v0
    s_lshl_b32 s{sT0}, s{sW}, 3
    v_add_u32 v19, s{sT0}, v17
    v_lshlrev_b32 v52, 8, v19
    v_and_b32 v19, 15, v19
    v_xor_b32 v19, v19, v18
    v_lshl_add_u32 v19, v19, 4, v52
    v_accvgpr_write_b32 a{aPARK}, v19
    v_xor_b32 v19, 64, v19
    v_accvgpr_write_b32 a{aPARK+1}, v19
    v_lshlrev_b32 v19, 1, v17
    v_xor_b32 v19, v19, v18
    v_lshl_add_u32 v19, v19, 4, v52
    v_accvgpr_write_b32 a{aPARK+2}, v19
    v_xor_b32 v19, 0x80, v19
    v_accvgpr_write_b32 a{aPARK+3}, v19''')
    k(f'''v_lshrrev_b32 v18, 2, v0
    v_and_b32 v19, 7, v18
    v_and_b32 v52, 3, v0
    v_lshlrev_b32 v52, 3, v52
    v_lshl_add_u32 v52, v19, 5, v52
    v_lshl_add_u32 v53, v18, 9, v52
    v_add_u32 v{vWA}, 0x10000, v53''')
    for i in range(1, 8): k(f'v_xor_b32 v{vWA+i}, {32*i}, v{vWA}')
    k(f'''v_lshl_add_u32 v53, v19, 8, v52
    v_lshrrev_b32 v19, 5, v0
    v_lshl_add_u32 v53, v19, 12, v53
    v_add_u32 v53, 0x800, v53
    v_accvgpr_write_b32 a{aPARK+4}, v53
    v_lshlrev_b32 v{vCS}, 6, v17
    v_add_u32 v{vCS}, {TBL}, v{vCS}
    v_and_b32 v52, 1, v17
    v_lshl_or_b32 v52, v52, 1, v19
    v_and_b32 v18, 15, v0
    v_xor_b32 v52, v52, v18
    v_lshlrev_b32 v52, 4, v52
    v_and_b32 v19, 7, v0
    v_lshl_add_u32 v52, v19, 8, v52
    v_bfe_u32 v19, v0, 3, 1
    v_lshl_add_u32 v52, v19, 12, v52
    v_add_u32 v52, 0x10000, v52
    v_accvgpr_write_b32 a{aPARK+5}, v52
    v_and_b32 v19, 3, v0
    v_cmp_eq_u32 vcc, 0, v19
    v_mov_b32 v19, 0x3f803f80
    s_nop 0
    v_cndmask_b32 v19, 0, v19, vcc
    v_accvgpr_write_b32 a{aPARK+6}, v19''')
    for s in range(1, NPRE):
        for it in wdma(s) + xnload(2*s) + xnload(2*s+1): k.item(it)
    SC = 128.0 ** -0.5 * math.log2(math.e)
    k(f's_mov_b32 s{sT0}, {f2u(SC)}')
    k(f'''v_lshrrev_b32 v17, 5, v16
    v_and_b32 v18, 0x10, v16
    v_lshl_add_u32 v17, v17, 6, v18
    v_add_u32 v17, {TBL}, v17''')
    for i in range(128): k(f'v_accvgpr_write_b32 a{i}, 0')
    k.wait(vm=['mod'])
    for i in range(8):
        k(f'v_add_f32 v{20+i}, v{20+i}, v{28+i}')
        k(f'v_add_f32 v{36+i}, v{36+i}, v{44+i}')
    for i in range(8): k(f'v_add_f32 v{20+i}, v{20+i}, v{36+i}')
    for i in range(4): k(f'v_cvt_pk_bf16_f32 v{28+i}, v{20+2*i}, v{21+2*i}')
    for i in range(4):
        k(f'v_lshlrev_b32 v{20+2*i}, 16, v{28+i}')
        k(f'v_and_b32 v{21+2*i}, 0xffff0000, v{28+i}')
    for i in range(4): k(f'v_add_f32 v{24+i}, 1.0, v{24+i}')
    for i in range(2): k(f'v_cvt_pk_bf16_f32 v{28+i}, v{24+2*i}, v{25+2*i}')
    for i in range(2):
        k(f'v_lshlrev_b32 v{24+2*i}, 16, v{28+i}')
        k(f'v_and_b32 v{25+2*i}, 0xffff0000, v{28+i}')
    for i in range(8): k(f'v_mul_f32 v{20+i}, s{sT0}, v{20+i}')
    k.ds('ds_write_b128 v17, v[24:27]')
    k.ds('ds_write_b128 v17, v[20:23] offset:32')
    k.wait(vm=['W0'], lg0=True)
    k('s_barrier')
    stamp()
    def areads(f):
        ks, db = divmod(f, 16); s, kl = divmod(ks, 2)
        a = aRING + 4*(f % 16)
        return [('ds', f'ds_read_b64_tr_b16 a[{a+2*j}:{a+2*j+1}], v{vWA+(db&7)} offset:{kl*16384 + j*8192 + (db>>3)*256 + (R(s)&1)*32768}', f'A{f}') for j in range(2)]
    def csreads(ks):
        b = CSB[ks & 1]
        return [('ds', f'ds_read_b128 v[{b+4*q}:{b+4*q+3}], v{vCS} offset:{ks*256 + q*16}', f'C{ks}') for q in (0, 2, 1, 3)]
    def hcalc(ks):
        b = CSB[ks & 1]; x = Q + 8*(ks % 8); h = HB[ks & 1]
        out = [('wait', dict(vm=[f'X{ks}'], lg=[f'C{ks}']))]
        for i in range(4):
            out.append(f'v_fma_mix_f32 v{vT0}, v{x+i}, v{b+2*i}, v{b+8+2*i} op_sel:[0,0,0] op_sel_hi:[1,0,0]')
            out.append(f'v_fma_mix_f32 v{h+i}, v{x+i}, v{b+2*i+1}, v{b+9+2*i} op_sel:[1,0,0] op_sel_hi:[1,0,0]')
            out.append(f'v_fma_mix_f32 v{b+8+2*i}, v{x+4+i}, v{b+2*i}, v{b+8+2*i} op_sel:[0,0,0] op_sel_hi:[1,0,0]')
            out.append(f'v_cvt_pk_bf16_f32 v{h+i}, v{vT0}, v{h+i}')
            out.append(f'v_fma_mix_f32 v{b+9+2*i}, v{x+4+i}, v{b+2*i+1}, v{b+9+2*i} op_sel:[1,0,0] op_sel_hi:[1,0,0]')
            out.append(f'v_cvt_pk_bf16_f32 v{h+4+i}, v{b+8+2*i}, v{b+9+2*i}')
        return out
    def kvdma(t, vpart=True, vfix=None):
        out = [f's_add_u32 m0, s{sW4K}, {(t % 8)*16384}', f's_mov_b32 s{sKO}, {(t+2)*8192}']
        out.append(('vm', f'buffer_load_dwordx4 v{vKV0}, s[{SK}:{SK+3}], s{sKO} offen lds', f'S{t}'))
        out.append(('vm', f'buffer_load_dwordx4 v{vKV1}, s[{SK}:{SK+3}], s{sKO} offen offset:1024 lds', f'S{t}'))
        if vpart:
            if vfix is not None: out.append(f's_mov_b32 s{sKO}, {vfix}')
            out.append(('vm', f'buffer_load_dwordx4 v{vVV0}, s[{SV}:{SV+3}], s{sKO} offen offset:2048 lds', f'S{t}'))
            out.append(('vm', f'buffer_load_dwordx4 v{vVV1}, s[{SV}:{SV+3}], s{sKO} offen offset:3072 lds', f'S{t}'))
        return out
    def kreads(u, tag):
        return [('ds', f'ds_read_b128 a[{aK+16*kb+4*ks}:{aK+16*kb+4*ks+3}], v{vKA+ks} offset:{u*16384 + kb*8192}', f'{tag}{4*kb+ks}') for kb in range(2) for ks in range(4)]
    LA = opt.get('la', 6)
    PAUSE = 6
    for it in csreads(0) + csreads(1): k.item(it)
    for f in range(LA):
        for it in areads(f): k.item(it)
    for it in hcalc(0): k.item(it)
    k.wait(lg=['A0', 'A1'])
    k('s_nop 0')
    N = 576
    gaps = [[] for _ in range(N)]
    def place_vm(items, g, step):
        pend = []
        for it in items:
            if isinstance(it, str): pend.append(it); continue
            while gload(gaps[g]) > 0: g += 1
            for i, sc in enumerate(reversed(pend)): gaps[g - i].insert(0, sc)
            pend = []
            gaps[g].append(it); g += step
        return g
    early = []
    for s in range(NPRE, 4): early += wdma(s) + xnload(2*s) + xnload(2*s+1)
    if early: place_vm(early, 2, max(1, 48 // sum(1 for x in early if not isinstance(x, str))))
    for s in range(9):
        nb = 64*(s+1) - 2*LA
        if s <= 4: dm = wdma(s+4) + xnload(2*s+8) + xnload(2*s+9)
        elif s == 5: dm = kvdma(-2, vpart=False) + kvdma(-1, vpart=False)
        elif s == 6: dm = kvdma(0, vfix=3*8192) + kvdma(1)
        elif s == 7: dm = kvdma(2) + kvdma(3)
        else: dm = []
        place_vm(dm, nb + 2, 5)
        nxt = [f'W{s+1}'] if s < 8 else ['S-2', 'S-1']
        gaps[nb-2].append(('wait', dict(vm=nxt, lg0=True)))
        gaps[nb-1].append('s_barrier')
        if s in (1, 3, 5, 7):
            for i in range(8): gaps[nb - 5 + i//2].append(f'v_xor_b32 v{vWA+i}, 0x10000, v{vWA+i}')
        if s == 5:
            for i in range(4): gaps[nb - 7 + i//2].append(f'v_accvgpr_read_b32 v{vKV0+i}, a{aPARK+i}')
    for s in range(9):
        b = 64*s - 2*LA
        rd = []
        for f in range(32*s, 32*s+32):
            if f >= LA: rd += areads(f)
            if f % 16 == LA + 1 and f//16 + 2 < 18: rd += csreads(f//16 + 2)
        pour(gaps, rd, max(b, 0), b + 63 - PAUSE, cap=2)
    for ks in range(18):
        g = 32*ks
        if ks + 1 < 18: pour(gaps, hcalc(ks+1), g, g + 29, cap=2)
    for f in range(2, 288, 2):
        gaps[2*f - 1].append(('wait', dict(lg=[f'A{f}', f'A{f+1}'])))
    def qcvt(qb, tb, ks):
        q = Q + 16*(2*qb + tb) + 4*ks
        o = []
        for y in range(2):
            a = ACC + 4*((8*qb + 2*ks + y)*2 + tb)
            o += [f'v_cvt_pk_bf16_f32 v{q+2*y+i}, v{a+2*i}, v{a+2*i+1}' for i in range(2)]
        return o, [f'v_permlane16_swap_b32 v{q+i}, v{q+2+i}' for i in range(2)]
    def qhead(qb):
        o = []; pend = []
        for ks in range(4):
            for tb in range(2):
                c, sw = qcvt(qb, tb, ks)
                o += c + pend; pend = sw
        return o + ['v_nop', 'v_nop'] + pend
    g = 544
    nb = 576 - 2*LA
    pour(gaps, [f'v_accvgpr_read_b32 v{vKA}, a{aPARK+5}'] + [f'v_xor_b32 v{vKA+i}, {i*64}, v{vKA}' for i in range(1, 4)], g, g + 6)
    pour(gaps, kreads(2, 'K0_'), nb, nb + 7)
    h0 = qhead(0)
    pour(gaps, h0[:36], g + 8, 575, cap=2)
    if opt.get('verbose'):
        for ks in (0, 1, 2, 3, 8, 9, 16, 17): print('ks', ks, ''.join(str(gload(x)) for x in gaps[32*ks:32*ks+32]))
    mfs = []
    for n in range(N):
        f, tb = divmod(n, 2); ks, db = divmod(f, 16)
        if db & 1: tb ^= 1
        a = aRING + 4*(f % 16); d = ACC + 4*(2*db + tb); h = HB[ks & 1] + 4*tb
        mfs.append(f'{MF} v[{d}:{d+3}], a[{a}:{a+3}], v[{h}:{h+3}], ' + (f'v[{d}:{d+3}]' if ks else '0'))
    emit(mfs, gaps)
    stamp()
    def qk(cb, kb, ks, dst, c):
        d = dst + 8*cb + 4*kb; q = Q + 16*cb + 4*ks; a = aK + 16*kb + 4*ks
        return f'{MF} v[{d}:{d+3}], a[{a}:{a+3}], v[{q}:{q+3}], ' + (f'v[{d}:{d+3}]' if ks else c)
    def rowmax(src, m, t):
        o = [f'v_max3_f32 v{m}, v{src}, v{src+1}, v{src+2}', f'v_max3_f32 v{m}, v{m}, v{src+3}, v{src+4}',
             f'v_max3_f32 v{m}, v{m}, v{src+5}, v{src+6}', f'v_max_f32 v{m}, v{m}, v{src+7}']
        for sw in ('32', '16'):
            o += [f'v_mov_b32 v{t}, v{m}', 'v_nop', 'v_nop', f'v_permlane{sw}_swap_b32 v{m}, v{t}', f'v_max_f32 v{m}, v{m}, v{t}']
        return o
    def initnm(cbs):
        per = []
        for n, cb in enumerate(cbs):
            src = S[0] + 8*cb; nm = NM + 4*cb; m = vMX + 2*n
            o = [x for x in rowmax(src, m, m+1)]
            o.append(f'v_add_f32 v{m}, s{sMRG}, v{m}')
            o += [f'v_sub_f32 v{nm+i}, 0, v{m}' for i in range(4)]
            o += [f'v_sub_f32 v{src+i}, v{src+i}, v{m}' for i in range(8)]
            per.append(o)
        out = []; skip = False
        for a, b in zip(*per):
            if a == 'v_nop':
                if not skip: out.append(a)
                skip = True; continue
            skip = False
            out += [a, b]
        return out
    for it in h0[36:]: k(it)
    k.wait(lg0=True)
    k('s_nop 0')
    mfs = [qk(cb, kb, ks, S[0], '0') for cb in range(4) for kb in range(2) for ks in range(4)]
    gaps = [[] for _ in range(32)]
    pour(gaps, qhead(1), 0, 14)
    kr = kreads(3, 'K1_')
    for i in range(8): gaps[24 + i].append(kr[i])
    misc = [f'v_accvgpr_read_b32 v{vVA}, a{aPARK+4}', f'v_accvgpr_read_b32 v{vT0}, a{aPARK+6}']
    misc += [f'v_xor_b32 v{vVA+i}, {i*32}, v{vVA}' for i in range(1, 8)]
    misc += [f'v_accvgpr_write_b32 a{aONE+i}, v{vT0}' for i in range(4)]
    pour(gaps, misc + initnm((0, 1)), 15, 31)
    emit(mfs, gaps)
    dm = kvdma(4) + kvdma(5)
    zero = [f'v_mov_b32 v{P[1]+i}, 0' for i in range(16)] + [f'v_mov_b32 v{L[1]+i}, 0' for i in range(16)]
    for it in dm:
        k.item(it)
        if not isinstance(it, str):
            for z in zero[:4]: k(z)
            zero = zero[4:]
    for it in initnm((2, 3)): k(it)
    if PF: k(f'v_lshlrev_b32 v1, 5, v0')
    k(f'''s_mov_b32 s{sKO}, {7*8192}
    s_mov_b32 s{sST}, 8192
    s_mov_b32 s{sST+1}, 8192
    s_mov_b32 s{sLIM}, {67*8192}''')
    k(f's_add_u32 s{sMB}, s{sW4K}, 0x10000')
    for i in range(4): k(f'v_xor_b32 v{vKA+i}, 0x10000, v{vKA+i}')
    k.wait(vm=['S1'], lg0=True)
    k('s_barrier')
    stamp()
    def vreads(u):
        return [('ds', f'ds_read_b64_tr_b16 a[{aV+4*db+2*j}:{aV+4*db+2*j+1}], v{vVA+db} offset:{u*16384 + j*8192}', f'V{db}') for db in range(8) for j in range(2)]
    def pv(db, cb, p):
        a = aV + 4*db; d = 16*db + 4*cb; b = P[p] + 4*cb
        return f'{MF} a[{d}:{d+3}], a[{a}:{a+3}], v[{b}:{b+3}], a[{d}:{d+3}]'
    def lsum(cb, p):
        return f'{MF} v[{L[p]+4*cb}:{L[p]+4*cb+3}], a[{aONE}:{aONE+3}], v[{P[p]+4*cb}:{P[p]+4*cb+3}], v[{L[p^1]+4*cb}:{L[p^1]+4*cb+3}]'
    if opt.get('align'): k('.p2align 3' if opt['align'] == 1 else f'.p2align {opt["align"]}')
    k(f'LOOP_{name}:')
    extras = opt.get('extras', {1: 'd', 2: 'm', 3: 'd', 5: 'd', 6: 'm', 7: 'd', 10: 'm', 14: 'm'})
    tailm = opt.get('tailm', [])
    for u in range(4):
        p = u & 1
        k.lq = []; k.vq = []
        ds = vreads(u) + kreads(u, 'K')
        dms = [('vm', f'buffer_load_dwordx4 v{vKV0}, s[{SK}:{SK+3}], s{sKO} offen lds', None),
               ('vm', f'buffer_load_dwordx4 v{vKV1}, s[{SK}:{SK+3}], s{sKO} offen offset:1024 lds', None),
               ('vm', f'buffer_load_dwordx4 v{vVV0}, s[{SV}:{SV+3}], s{sKO} offen offset:2048 lds', None),
               ('vm', f'buffer_load_dwordx4 v{vVV1}, s[{SV}:{SV+3}], s{sKO} offen offset:3072 lds', None)]
        gaps = [[] for _ in range(68)]
        g = 0; lpos = []; dmg = []; kpos = []
        for i in range(16):
            for x in extras.get(i, ''):
                if x == 'd': gaps[g] += ds[:2]; ds = ds[2:]
                elif x == 'm': gaps[g].append(dms.pop(0)); dmg.append(g)
                g += 1
            a = vE + 2*(i % 2); src = S[p] + 2*i
            gaps[g].append(f'v_exp_f32 v{a}, v{src}')
            gaps[g+1].append(f'v_exp_f32 v{a+1}, v{src+1}')
            if len(ds) <= 8: kpos.append(g+2)
            gaps[g+2] += [ds.pop(0), f'v_cvt_pk_bf16_f32 v{P[p]+i}, v{a}, v{a+1}']
            g += 3
            if i % 4 == 3: lpos.append(g + 1)
        for gg in tailm: gaps[gg].append(dms.pop(0)); dmg.append(gg)
        assert not ds and not dms
        mf = [qk(cb, kb, ks, S[p^1], f'v[{NM+4*cb}:{NM+4*cb+3}]') for cb in range(4) for kb in range(2) for ks in range(4)]
        mf += [pv(db, cb if db % 2 == 0 else 3 - cb, p^1) for db in range(8) for cb in range(4)]
        for cb, lp in enumerate(lpos): mf.insert(lp, lsum(cb, p))
        for i in range(8):
            last = max(n for n, m in enumerate(mf) if f', a[{aK+4*i}:{aK+4*i+3}],' in m)
            assert kpos[i] >= last, (i, kpos[i], last)
        pvs = [n for n, m in enumerate(mf) if m.startswith(f'{MF} a[')]
        gaps[pvs[0]-1].append(('wait', dict(lg=['V0', 'V1', 'V2', 'V3'])))
        gaps[pvs[16]-1].append(('wait', dict(lg=['V4', 'V5', 'V6', 'V7'])))
        if u == 2: gaps[dmg[0]-3].append(f's_xor_b32 s{sMB}, s{sMB}, 0x10000')
        gaps[dmg[0]-2].append(f's_add_u32 m0, s{sMB}, {((u+2)&3)*16384}')
        gaps[dmg[0]-1].append(f's_add_u32 s{sKO}, s{sKO}, s{sST+p}')
        e = lpos[3]
        gaps[g].append(f'v_max3_f32 v{vMX}, v{L[p]}, v{L[p]+4}, v{L[p]+8}')
        cg = opt.get('chk', 65)
        gaps[cg] += [f'v_max_f32 v{vMX}, v{vMX}, v{L[p]+12}', f'v_cmp_lt_f32 vcc, s{sTHR}, v{vMX}']
        if u == 3:
            tog = [f'v_xor_b32 v{vVA+i}, 0x10000, v{vVA+i}' for i in range(8)] + [f'v_xor_b32 v{vKA+i}, 0x10000, v{vKA+i}' for i in range(4)]
            pour(gaps, tog, g + 1, 66)
            gaps[66].append(f's_cmp_lt_u32 s{sKO}, s{sLIM}')
        bg = opt.get('bar', 63)
        nb4 = sum(1 for x in dmg if x < bg - 1)
        if PF:
            nb4 += 1
            if u == 0:
                gaps[59].append('buffer_load_dword v2, v1, s[52:55], s56 offen')
                gaps[60].append('s_add_u32 s56, s56, s57')
        gaps[bg-1].append(f's_waitcnt vmcnt({12+nb4}) lgkmcnt(0)' if p else 's_waitcnt lgkmcnt(0)')
        if p: gaps[bg].append('s_barrier')
        gaps[67] += [f's_cbranch_vccnz SLOW{u}_{name}', f'BACK{u}_{name}:']
        if u == 3: gaps[67].append(f's_cbranch_scc1 LOOP_{name}')
        if opt.get('verbose'): print('period', u, ''.join(str(gload(x)) for x in gaps), lpos)
        emit(mf, gaps)
    k(f"""s_cmp_eq_u32 s{sLIM}, 0
    s_cbranch_scc1 TAIL_{name}
    s_mul_i32 s{sT0}, s{sG}, {256*1152}
    v_lshrrev_b32 v3, 3, v0
    s_add_u32 s{SK}, s4, s{sT0}
    v_and_b32 v4, 7, v0
    s_addc_u32 s{SK+1}, s5, 0
    v_lshrrev_b32 v5, 4, v0
    s_and_b32 s{SK+1}, s{SK+1}, 0xffff
    v_lshlrev_b32 v5, 1, v5
    s_mov_b32 s{SK+2}, {256*1152}
    v_xor_b32 v4, v4, v5
    s_mov_b32 s{SV}, s{SK}
    v_mul_u32_u24 v3, 1152, v3
    s_mov_b32 s{SV+1}, s{SK+1}
    v_lshl_add_u32 v3, v4, 4, v3
    s_mul_i32 s{sT0}, s{sW}, {32*1152}
    s_mov_b32 s{SV+2}, {256*1152}
    v_add_u32 v{vKV0}, s{sT0}, v3
    s_mov_b32 s{sKO}, {147456 - 128}
    v_add_u32 v{vKV0+1}, {9216 - 1024}, v{vKV0}
    s_mov_b32 s{sST}, {(128 - 147456) & 0xffffffff}
    v_add_u32 v{vKV0+2}, {2*(9216 - 1024)}, v{vKV0}
    s_mov_b32 s{sST+1}, 147456
    v_add_u32 v{vKV0+3}, {3*(9216 - 1024)}, v{vKV0}
    s_mov_b32 s{sLIM}, 0
    s_branch LOOP_{name}
    TAIL_{name}:""")
    stamp()
    OB, OACC, OPK, vR, vSA = 160, [80, 96], 48, 64, 72
    Rg = lambda s: (s + 1) % 4
    k.lq = []; k.vq = ['O0']*4 + ([None] if PF else []) + ['O0']*4 + ['O1']*8
    def odma(s):
        out = []
        for half in range(2):
            out.append(f's_add_u32 m0, s{sW4K}, {Rg(s)*32768 + half*16384}')
            out.append(f's_mov_b32 s{sKO}, {half*147456 + s*128}')
            for i in range(4):
                out.append(('vm', f'buffer_load_dwordx4 v{vKV0+i}, s[{SK}:{SK+3}], s{sKO} offen offset:{i*1024} lds', f'O{s}'))
        return out
    for it in vreads(0): k.item(it)
    for cb in range(4): k(f'v_rcp_f32 v{vE+2*cb}, v{L[1]+4*cb}')
    k(f"""s_lshl_b32 s{sOO}, s{sRB}, 2
    s_add_u32 s{sOO}, s{sOO}, s{sW}
    s_mul_i32 s{sOO}, s{sOO}, {4*147456}
    s_mul_i32 s{sT0}, s{sG}, 9216
    s_add_u32 s{sOO}, s{sOO}, s{sT0}
    s_add_u32 s{sOO}, s{sOO}, {PART1}
    s_add_u32 s{sOO+1}, s{sOO}, {2*147456}""")
    adr = f"""v_lshrrev_b32 v3, 2, v0
    v_bfe_u32 v4, v0, 3, 2
    v_and_b32 v5, 3, v0
    v_lshlrev_b32 v5, 3, v5
    v_lshl_add_u32 v5, v4, 5, v5
    v_lshl_add_u32 v{vR}, v3, 7, v5
    v_xor_b32 v{vR+1}, 32, v{vR}
    v_xor_b32 v{vR+2}, 64, v{vR}
    v_xor_b32 v{vR+3}, 0x60, v{vR}
    v_add_u32 v{vR+4}, 0x10000, v{vR}
    v_add_u32 v{vR+5}, 0x10000, v{vR+1}
    v_add_u32 v{vR+6}, 0x10000, v{vR+2}
    v_add_u32 v{vR+7}, 0x10000, v{vR+3}
    v_bfe_u32 v3, v0, 3, 1
    v_mul_u32_u24 v3, 147456, v3
    v_lshrrev_b32 v4, 4, v0
    v_lshl_add_u32 v3, v4, 7, v3
    v_and_b32 v4, 7, v0
    v_lshl_add_u32 v{vSA}, v4, 4, v3""".split('\n')
    adr = [x.strip() for x in adr]
    cnt = [0]
    def onorm(D, cb, packed):
        o = []
        t = 16 + 8*(cnt[0] % 4); cnt[0] += 1
        b = OB + (((cb >> 1)*4 + D)*2 + (cb & 1))*4
        for i in range(8): o.append(f'v_accvgpr_read_b32 v{t+i}, a{16*(2*D + i//4) + 4*cb + i%4}')
        if packed:
            for i in range(4): o.append(f'v_pk_mul_f32 v[{t+2*i}:{t+2*i+1}], v[{t+2*i}:{t+2*i+1}], v[{vE+2*cb}:{vE+2*cb+1}] op_sel_hi:[1,0]')
        else:
            for i in range(8): o.append(f'v_mul_f32 v{t+i}, v{t+i}, v{vE+2*cb}')
        for i in range(4): o.append(f'v_cvt_pk_bf16_f32 v{b+i}, v{t+2*i}, v{t+2*i+1}')
        return o
    gaps = [[] for _ in range(32)]
    for db in range(1, 8): gaps[4*db - 1].append(('wait', dict(lg=[f'V{db}'])))
    pour(gaps, adr, 0, 10)
    pour(gaps, onorm(0, 0, False) + onorm(0, 1, False), 11, 31)
    k.wait(lg=['V0'])
    emit([pv(db, cb, 1) for db in range(8) for cb in range(4)], gaps)
    st = []
    for D in range(4):
        for cb in range(4):
            if 4*D + cb >= 2: st += onorm(D, cb, True)
    def oreads(f):
        s, r = divmod(f, 32); q, r = divmod(r, 16); ks, ii = divmod(r, 2)
        a = aRING + 4*(f % 16)
        return [('ds', f'ds_read_b64_tr_b16 a[{a+2*j}:{a+2*j+1}], v{vR + 2*q + ii + 4*(Rg(s) >> 1)} offset:{(Rg(s) & 1)*32768 + ks*4096 + j*2048}', f'A{f}') for j in range(2)]
    LA = opt.get('lao', 6)
    ins = {}
    dm = odma(2); pos = 2
    for it in dm:
        ins.setdefault(pos, []).append(it)
        if not isinstance(it, str): pos += 10
    ins.setdefault(100, []).extend([('wait', dict(vm=['O0'], lg0=True)), 's_barrier'])
    dm = odma(3); pos = 104
    for it in dm:
        ins.setdefault(pos, []).append(it)
        if not isinstance(it, str): pos += 10
    pos = len(st) - 4*LA - 8
    for f in range(LA):
        for it in oreads(f): ins.setdefault(pos, []).append(it); pos += 2
    for n, it in enumerate(st):
        for x in ins.get(n, []): k.item(x)
        k(it)
    k.wait(lg=['A0', 'A1'])
    k('s_nop 0')
    stamp()
    gaps = [[] for _ in range(N)]
    ST = opt.get('st', 'sc1')
    def oepi(pp):
        ac = OACC[pp & 1]; o = []
        for tb in range(2):
            d = OPK + 8*(pp & 1) + 4*tb
            for ii in range(2):
                for h in range(2): o.append(f'v_cvt_pk_bf16_f32 v{d+2*ii+h}, v{ac+8*ii+4*tb+2*h}, v{ac+8*ii+4*tb+2*h+1}')
        return o
    def ostore(pp):
        o = []
        for tb in range(2):
            d = OPK + 8*(pp & 1) + 4*tb
            if pp and pp % 8 == 0: o.append(f's_add_u32 s{sOO+tb}, s{sOO+tb}, 4096')
            o.append(('vm', f'buffer_store_dwordx4 v[{d}:{d+3}], v{vSA}, s[{SWS}:{SWS+3}], s{sOO+tb} offen offset:{(pp % 8)*512} {ST}', None))
        return o
    for pp in range(17): place_vm(ostore(pp), 32*(pp+1) + 14, 5)
    for s in range(8):
        nb = 64*(s+1) - 2*LA
        if s <= 4: place_vm(odma(s+4), nb + 2, 6)
        gaps[nb-2].append(('wait', dict(vm=[f'O{s+1}'], lg0=True)))
        gaps[nb-1].append('s_barrier')
    for pp in range(17): pour(gaps, oepi(pp), 32*(pp+1) + 2, 32*(pp+1) + 12, cap=2)
    for s in range(9):
        b = 64*s - 2*LA
        rd = []
        for f in range(32*s, 32*s+32):
            if f >= LA: rd += oreads(f)
        pour(gaps, rd, max(b, 0), b + 63 - PAUSE, cap=2)
    for g, items in enumerate(gaps):
        for it in items:
            if not isinstance(it, str) and it[0] == 'ds':
                f = int(it[2][1:]); assert (f < 16 or g >= 2*(f - 16) + 1) and g <= 2*f - 5, (f, g)
    for f in range(2, 288, 2):
        gaps[2*f - 1].append(('wait', dict(lg=[f'A{f}', f'A{f+1}'])))
    if opt.get('verbose'):
        for s in (0, 1, 4, 5, 8): print('slab', s, ''.join(str(gload(x)) for x in gaps[64*s:64*s+64]))
    mfs = []
    for n in range(N):
        f, tb = divmod(n, 2); pp, r = divmod(f, 16); ks, ii = divmod(r, 2)
        if ii: tb ^= 1
        a = aRING + 4*(f % 16); d = OACC[pp & 1] + 8*ii + 4*tb; b = OB + (ks*2 + tb)*4
        mfs.append(f'{MF} v[{d}:{d+3}], a[{a}:{a+3}], v[{b}:{b+3}], ' + (f'v[{d}:{d+3}]' if ks else '0'))
    emit(mfs, gaps)
    k('s_nop 7')
    for it in oepi(17) + ostore(17): k.item(it)
    STP.end(sW, SWS)
    k(f'END_{name}:')
    k('s_endpgm')
    for u in range(4):
        k(f'SLOW{u}_{name}:')
        k(f's_call_b64 s[{sRET}:{sRET+1}], FIX{u&1}_{name}')
        k(f's_branch BACK{u}_{name}')
    for p in range(2):
        k(f'FIX{p}_{name}:')
        k('s_nop 7')
        for cb in range(4):
            src = S[p] + 8*cb; nx = S[p^1] + 8*cb; nm = NM + 4*cb; lo = L[p^1] + 4*cb
            k(f'v_log_f32 v{vMX+2}, v{lo}')
            for it in rowmax(src, vMX, vMX+1): k(it)
            k(f'v_max_f32 v{vMX}, v{vMX}, v{vMX+2}')
            k(f'v_add_f32 v{vMX}, s{sMRG}, v{vMX}')
            k(f'v_max_f32 v{vMX}, 0, v{vMX}')
            k(f'v_exp_f32 v{vMX+1}, -v{vMX}')
            for i in range(4): k(f'v_sub_f32 v{nm+i}, v{nm+i}, v{vMX}')
            for i in range(8):
                k(f'v_sub_f32 v{src+i}, v{src+i}, v{vMX}')
                k(f'v_sub_f32 v{nx+i}, v{nx+i}, v{vMX}')
            k(f'v_mul_f32 v{lo}, v{lo}, v{vMX+1}')
            for db in range(8):
                for i in range(4):
                    k(f'v_accvgpr_read_b32 v{vE}, a{16*db+4*cb+i}')
                    k(f'v_mul_f32 v{vE}, v{vE}, v{vMX+1}')
                    k(f'v_accvgpr_write_b32 a{16*db+4*cb+i}, v{vE}')
            for i in range(4):
                k(f'v_exp_f32 v{vE}, v{src+2*i}')
                k(f'v_exp_f32 v{vE+1}, v{src+2*i+1}')
                k('s_nop 0')
                k(f'v_cvt_pk_bf16_f32 v{P[p]+4*cb+i}, v{vE}, v{vE+1}')
            k('s_nop 1')
            k(lsum(cb, p))
        k('s_nop 7')
        k(f's_setpc_b64 s[{sRET}:{sRET+1}]')
    return k

if __name__ == '__main__':
    import sys, chk
    k = build(stamps=True, opt=dict(verbose=True))
    t = assemble_file([k])
    open('k2.s', 'w').write(t)
    e = chk.check(t) + chk.check_waits(t, k.name, forced={f'TAIL_{k.name}': 2})
    print('\n'.join(e[:40])); print(len(e), 'problems')
```

```python
import math, struct
from asmlib import *
from layout import *
def f2u(x): return struct.unpack('<I', struct.pack('<f', x))[0]
MF = 'v_mfma_f32_16x16x32_bf16'
SG, SU, SD, SWS, SPF = 8, 12, 16, 20, 24
sW, sSL, sTG, sM, sK, sT0, sT1, sK2, sO, sPO, sH = 28, 29, 30, 31, 32, 33, 34, 35, 36, 38, 39
sR1, sR2, sD, sDV, sDO = 49, 50, 52, 78, 40
vRA, vD1, vD2, vXW, vXR, vSA, vPF, vK1, vDUM = 3, 6, 9, 12, 13, 14, 15, 17, 18
vT = 20
B16, BX, ACC, HHR, AR = 24, 56, [88, 120], 152, 192
XWIN = 147456
def build(name='k45_kernel', stamps=False, opt=None):
    opt = opt or {}
    k = E(name, 256, 256, lds=163840, vgpr=216, agpr=256)
    STP = Stamps(k, stamps, 3, base=60); stamp = STP.mark
    NSL = opt.get('nsl', 1); PFD = opt.get('pfd', 0); PF2 = opt.get('pf2', 0); LA = opt.get('la', 3); ST = opt.get('st', 'sc1')
    lg = int(math.log2(NSL))
    k('s_cmp_ge_u32 s2, 256')
    k(f's_cbranch_scc1 END_{name}')
    STP.begin()
    k('''s_load_dwordx2 s[46:47], s[0:1], 104
    s_load_dwordx4 s[40:43], s[0:1], 48
    s_load_dwordx2 s[44:45], s[0:1], 64''')
    k(f'''v_lshrrev_b32 v1, 6, v0
    v_and_b32 v0, 63, v0
    v_readfirstlane_b32 s{sW}, v1
    s_lshr_b32 s{sT1}, s2, 3
    s_and_b32 s{sSL}, s2, {8//NSL - 1}
    s_lshl_b32 s{sSL}, s{sSL}, {lg}
    s_and_b32 s{sT0}, s{sT1}, {NSL - 1}
    s_or_b32 s{sSL}, s{sSL}, s{sT0}
    s_lshr_b32 s48, s{sT1}, {lg}
    s_and_b32 s{sTG}, s2, 7
    s_lshr_b32 s{sTG}, s{sTG}, {3 - lg}
    s_lshl_b32 s{sTG}, s{sTG}, {5 - lg}
    s_add_u32 s{sTG}, s{sTG}, s48
    s_mul_i32 s{sT0}, s48, 43
    s_lshr_b32 s{sT0}, s{sT0}, 8
    s_mul_i32 s{sT0}, s{sT0}, 6
    s_sub_u32 s{sR1}, s48, s{sT0}
    s_mul_i32 s{sR1}, s{sR1}, {opt.get('rot1', 1)}
    v_lshlrev_b32 v{vXR}, 4, v0
    s_lshl_b32 s{sH}, s{sTG}, 2
    s_add_u32 s{sH}, s{sH}, s{sW}
    s_mul_i32 s{sH}, s{sH}, 18432
    s_add_u32 s{sH}, s{sH}, {H2}
    s_mul_i32 s{sT0}, s{sR1}, 3072
    s_add_u32 s{sH}, s{sH}, s{sT0}
    s_movk_i32 s51, 3072
    s_mul_i32 s{sM}, s{sW}, 3072
    s_lshl_b32 s{sT0}, s{sM}, 1
    s_add_u32 m0, s{sT0}, {3*24576}
    s_waitcnt lgkmcnt(0)''')
    srd(k, SWS, 46, WS_BYTES)
    def hdma(p):
        for hf in range(2):
            for i in range(3):
                k.vm(f'buffer_load_dwordx4 v{vXR}, s[{SWS}:{SWS+3}], s{sH} offen offset:{i*1024} lds', f'H{p}')
            if (p, hf) != (2, 1):
                k(f's_add_u32 m0, m0, {3072 if hf == 0 else 24576 - 3072}')
                k(f's_cmp_eq_u32 s{sR1}, {5 - 2*p - hf}')
                k(f's_cselect_b32 s{sT1}, {-5*3072}, s51')
                k(f's_add_u32 s{sH}, s{sH}, s{sT1}')
    hdma(0)
    k(f's_mul_i32 s{sT0}, s{sSL}, 1152')
    for d, p in ((SG, 40), (SU, 42)):
        k(f'''s_add_u32 s{d}, s{p}, s{sT0}
        s_addc_u32 s{d+1}, s{p+1}, 0
        s_and_b32 s{d+1}, s{d+1}, 0xffff
        s_sub_u32 s{d+2}, {576*9216}, s{sT0}
        s_mov_b32 s{d+3}, 0x00020000''')
    k(f'''s_mul_i32 s{sT1}, s{sSL}, {576*1152}
    s_add_u32 s{SD}, s44, s{sT1}
    s_addc_u32 s{SD+1}, s45, 0
    s_and_b32 s{SD+1}, s{SD+1}, 0xffff
    s_mov_b32 s{SD+2}, {576*1152}
    s_mov_b32 s{SD+3}, 0x00020000''')
    k(f's_mov_b32 s{sT1}, {96*9216}')
    for gi in range(6):
        k(f's_cmp_eq_u32 s{sR1}, {(6 - gi) % 6}')
        k(f's_cselect_b32 s{sD+gi}, {-5*96*9216}, s{sT1}')
    k(f'''s_add_u32 s{sD}, s{sD}, 128
    s_mul_i32 s{sT1}, s48, 57
    s_lshr_b32 s{sT1}, s{sT1}, 9
    s_mul_i32 s{sT1}, s{sT1}, 9
    s_sub_u32 s{sR2}, s48, s{sT1}
    s_mul_i32 s{sR2}, s{sR2}, {opt.get('rot2', 1)}''')
    if PFD or PF2:
        k(f'''s_cmp_ge_u32 s{sW}, 2
        s_cselect_b32 s{SPF}, s42, s40
        s_cselect_b32 s{SPF+1}, s43, s41
        s_add_u32 s{SPF}, s{SPF}, s{sT0}
        s_addc_u32 s{SPF+1}, s{SPF+1}, 0
        s_and_b32 s{SPF+1}, s{SPF+1}, 0xffff
        s_mov_b32 s{SPF+2}, s{SG+2}
        s_mov_b32 s{SPF+3}, 0x00020000
        s_lshl_b32 s48, s48, 1
        s_and_b32 s{sT1}, s{sW}, 1
        s_add_u32 s48, s48, s{sT1}
        s_mul_i32 s48, s48, {9*NSL}
        v_add_u32 v1, s48, v0
        v_cmp_gt_u32 vcc, {9*NSL}, v0
        v_mul_u32_u24 v{vPF}, 9216, v1
        v_mul_u32_u24 v{vPF+1}, 1152, v1
        s_lshr_b32 s{sT1}, s{sW}, 1
        s_lshl_b32 s{sT1}, s{sT1}, 7
        v_add_u32 v{vPF+1}, s{sT1}, v{vPF+1}
        v_mov_b32 v1, 0x40000000
        v_cndmask_b32 v{vPF}, v1, v{vPF}, vcc
        v_cndmask_b32 v{vPF+1}, v1, v{vPF+1}, vcc''')
    def pf(q):
        if q < 9: return ('vm', f'buffer_load_dword v{vDUM}, v{vPF}, s[{SPF}:{SPF+3}], 0 offen offset:{q*128}', None)
        return ('vm', f'buffer_load_dword v{vDUM}, v{vPF+1}, s[{SD}:{SD+3}], 0 offen offset:{(q-9)*256}', None)
    if PFD: k.item(pf(0))
    hdma(1)
    k(f'''v_lshrrev_b32 v1, 3, v0
    v_lshrrev_b32 v2, 4, v0
    v_lshlrev_b32 v2, 1, v2
    v_and_b32 v2, {opt.get('xm', 6)}, v2
    v_and_b32 v{vT}, 7, v0
    v_xor_b32 v2, v2, v{vT}
    v_lshlrev_b32 v2, 4, v2
    s_lshl_b32 s{sT0}, s{sW}, 3
    v_add_u32 v{vT}, s{sT0}, v1
    v_mul_u32_u24 v{vT}, 1152, v{vT}
    v_add_u32 v{vD2}, v{vT}, v2
    v_add_u32 v{vD2+1}, {32*1152 - 1024}, v{vD2}
    v_add_u32 v{vD2+2}, {2*(32*1152 - 1024)}, v{vD2}
    v_and_b32 v{vT}, 3, v1
    v_lshrrev_b32 v1, 5, v0
    v_lshl_add_u32 v{vT}, v1, 3, v{vT}
    s_and_b32 s{sT0}, s{sW}, 1
    s_lshl_b32 s{sT0}, s{sT0}, 4
    s_lshr_b32 s{sT1}, s{sW}, 1
    s_lshl_b32 s{sT1}, s{sT1}, 2
    s_add_u32 s{sT0}, s{sT0}, s{sT1}
    v_add_u32 v{vT}, s{sT0}, v{vT}
    v_mul_u32_u24 v{vT}, 9216, v{vT}
    v_add_u32 v{vD1}, v{vT}, v2
    v_add_u32 v{vD1+1}, {32*9216 - 1024}, v{vD1}
    v_add_u32 v{vD1+2}, {2*(32*9216 - 1024)}, v{vD1}''')
    hdma(2)
    def wdma(j, h):
        sc = [f's_add_u32 m0, s{sM}, {(j % 6)*24576 + h*12288}']
        if j < 54 and not opt.get('wsrc'):
            if h == 0:
                if j == 0: sc.append(f's_mul_i32 s{sK}, s{sR1}, {96*9216}')
                else: sc.append(f's_add_u32 s{sK}, s{sK}, s{sD + j % 6}')
            S = SU if h else SG; v = vD1
        else:
            hg = (2*(j - 54) + h) % 54
            if hg == 0: sc.append(f's_lshl_b32 s{sK}, s{sR2}, 7')
            elif hg % 6: sc.append(f's_add_u32 s{sK}, s{sK}, {96*1152}')
            else: sc.append(f's_add_u32 s{sK}, s{sK}, s{sDV + hg//6 - 1}')
            S = SD; v = vD2
        return sc, [('vm', f'buffer_load_dwordx4 v{v+i}, s[{S}:{S+3}], s{sK} offen offset:{i*1024} lds', f'W{j}') for i in range(3)]
    def wdma_now(j):
        for h in range(2):
            sc, ld = wdma(j, h)
            for x in sc: k(x)
            if len(sc) == 1: k('s_nop 0')
            for x in ld: k.item(x)
    wdma_now(0)
    for q in range(1, PFD): k.item(pf(q))
    if opt.get('pfc'):
        k(f's_lshr_b32 s{sT0}, s2, 1')
        k(f's_and_b32 s{sT0}, s{sT0}, 0x7c')
        k(f's_add_u32 s{sT0}, s{sT0}, s{sW}')
        code_prefetch(k, name, opt['pfc'], sT0, 88, 1, vDUM, back=True)
    K1 = -2*math.sqrt(2/math.pi)*math.log2(math.e)
    k(f'''v_bfe_u32 v1, v0, 2, 3
    v_lshrrev_b32 v2, 1, v1
    v_xor_b32 v2, s{sW}, v2
    v_lshlrev_b32 v2, 5, v2
    v_lshl_add_u32 v2, v1, 7, v2
    v_and_b32 v1, 3, v0
    v_lshl_add_u32 v2, v1, 3, v2
    v_lshrrev_b32 v1, 5, v0
    v_mul_u32_u24 v1, 3072, v1
    v_add_u32 v{vRA}, v1, v2
    v_add_u32 v{vRA+1}, 49152, v{vRA}
    v_add_u32 v{vRA+2}, 98304, v{vRA}''')
    wdma_now(1)
    k(f'''v_add_u32 v{vT}, {3*24576}, v{vXR}
    v_add_u32 v{vT+1}, {5*24576}, v{vXR}
    s_lshr_b32 s{sT0}, s{sW}, 1
    s_lshl_b32 s{sT0}, s{sT0}, 12
    s_and_b32 s{sT1}, s{sW}, 1
    s_lshl_b32 s{sT1}, s{sT1}, 3
    s_add_u32 s{sT0}, s{sT0}, s{sT1}
    s_add_u32 s{sT0}, s{sT0}, {XWIN}
    v_add_u32 v{vXW}, s{sT0}, v{vXR}
    v_mov_b32 v{vK1}, {f2u(K1)}
    s_mov_b32 s{sK2}, {f2u(K1*0.044715)}
    v_bfe_u32 v1, v0, 3, 2
    v_mul_u32_u24 v1, 73728, v1
    v_lshrrev_b32 v2, 5, v0
    v_lshl_add_u32 v1, v2, 7, v1
    v_and_b32 v2, 7, v0
    v_lshl_add_u32 v{vSA}, v2, 4, v1
    s_mul_i32 s{sO}, s{sTG}, {8*73728}
    s_mul_i32 s{sT0}, s{sSL}, 9216
    s_add_u32 s{sO}, s{sO}, s{sT0}
    s_lshl_b32 s{sT0}, s{sW}, 8
    s_add_u32 s{sO}, s{sO}, s{sT0}
    s_add_u32 s{sO}, s{sO}, {PART2}
    s_lshl_b32 s{sT0}, s{sR2}, 10
    s_add_u32 s{sO}, s{sO}, s{sT0}
    s_add_u32 s{sO+1}, s{sO}, {4*73728}
    s_mov_b32 s{sT0}, {128 - 5*96*1152}
    s_movk_i32 s{sT1}, 1024''')
    for v in range(1, 9):
        k(f's_cmp_eq_u32 s{sR2}, {9 - v}')
        k(f's_cselect_b32 s{sDV+v-1}, {128 - 5*96*1152 - 1152}, s{sT0}')
        k(f's_cselect_b32 s{sDO+v-1}, {-8192}, s{sT1}')
    wdma_now(2)
    k(f'v_add_u32 v{vXR}, {XWIN}, v{vXR}')
    stamp()
    def bh2(ks, tb): return ar(16*ks + 4*tb, 4) if ks < 16 else vr(B16 + 16*(ks - 16) + 4*tb, 4)
    def bhh(ks, tb): return vr(BX + 16*ks + 4*tb, 4) if ks < 2 else ar(16*(ks - 2) + 4*tb, 4)
    for p in range(3):
        k.wait(vm=[f'H{p}'], lg0=(p == 1))
        k('s_barrier')
        if p == 0: stamp()
        ld = []
        if p == 1:
            for h in range(2):
                sc, l = wdma(3, h); ld += sc + l
        for k6 in range(6):
            for tb in range(4):
                k.ds(f'ds_read_b128 {bh2(6*p + k6, tb)}, v{vT + (p == 2)} offset:{(p & 1)*24576 + tb*6144 + k6*1024}')
                if ld and tb & 1: k.item(ld.pop(0))
        assert not ld
    k.wait(vm=['W0'], lg0=True)
    k('s_barrier')
    stamp()
    N = 1944; NF = N // 4; NG = 81
    def areads(f):
        j, fi = divmod(f, 6)
        if j < 54: kl, h = divmod(fi, 2)
        else: h, kl = divmod(fi, 3)
        a = AR + 4*fi; sl = j % 6
        return [('ds', f'ds_read_b64_tr_b16 v[{a+2*jj}:{a+2*jj+1}], v{vRA + sl//2} offset:{(sl & 1)*24576 + h*12288 + kl*1024 + jj*6144}', f'A{f}') for jj in range(2)]
    gaps = [[] for _ in range(N)]
    for f in range(LA):
        for it in areads(f): k.item(it)
    q0 = []
    for h in range(2):
        sc, l = wdma(4, h); q0.append((sc, l))
    for x in q0[0][0] + q0[0][1][:LA]: k.item(x)
    for f in range(NF):
        g = 4*f
        if f + LA < NF:
            r = areads(f + LA)
            if not opt.get('nords'): gaps[g].append(r[0]); gaps[g+1].append(r[1])
        j, i = divmod(f + LA, 6)
        if j + 4 < NG:
            sc, l = wdma(j + 4, i // 3)
            if i % 3 == 0:
                for n, x in enumerate(sc): gaps[g + n].append(x)
            if opt.get('burst'):
                if i % 3 == 0:
                    for n, gg in enumerate((2, 3, 6)): gaps[g+gg].append(l[n])
            elif not opt.get('nodma'): gaps[g+2].append(l[i % 3])
    XT = {}
    def xwrite(u, src):
        return [('ds', f'ds_write_b64 v{vXW}, v[{src+2*tb}:{src+2*tb+1}] offset:{(u & 1)*8192 + tb*1024}', f'XW{u}') for tb in range(4)]
    def xread(u):
        return [('ds', f'ds_read_b128 {bhh(2*u+kk, tb)}, v{vXR} offset:{(u & 1)*8192 + kk*4096 + tb*1024}', f'XR{u}') for kk in range(2) for tb in range(4)]
    hreg = lambda u: HHR + 8*(u - 3) if 3 <= u <= 7 else HHR
    bar = lambda j: 24*j - 4*LA
    def spread(items, g, step=1):
        for it in items:
            gaps[g].append(it); g += step
        return g
    if PFD:
        for q in range(PFD, 9 if PF2 else 14): gaps[144*(q - PFD) + 3].append(pf(q))
    if PF2:
        for q in range(9, 14): gaps[PF2 + 4*(q - 9) + 3].append(pf(q))
    for u in range(3):
        spread(xwrite(u, hreg(u)), 144*(u + 2), 1)
    XT[13] = ['XW0']
    spread(xread(0), bar(13) + 3, 2)
    for i in range(1, 9):
        g = max(bar(48 + i), 1152 + 16*i)
        w = xwrite(i + 1, hreg(i + 1)) if 2 <= i <= 6 else []
        spread(xread(i), g); spread(w, g + 8)
        XT[49 + i] = [f'XR{i}', f'XW{i+1}']
    def gelu(u):
        a = ACC[u & 1]; o = []
        for e in range(16):
            g_, u_, t = a + e, a + 16 + e, vT + (e & 1)
            o += [f'v_mul_f32 v{t}, v{g_}, v{g_}', f'v_fma_f32 v{t}, v{t}, s{sK2}, v{vK1}', f'v_mul_f32 v{t}, v{t}, v{g_}', f'v_exp_f32 v{t}, v{t}',
                  f'v_mul_f32 v{u_}, v{u_}, v{g_}']
            if e: o.append(f'v_mul_f32 v{u_-1}, v{u_-1}, v{vT + (~e & 1)}')
            o.append(f'v_add_f32 v{t}, 1.0, v{t}')
            if e >= 2 and e % 2 == 0: o.append(f'v_cvt_pk_bf16_f32 v{hreg(u) + e//2 - 1}, v{u_-2}, v{u_-1}')
            o.append(f'v_rcp_f32 v{t}, v{t}')
        o += ['v_nop', f'v_mul_f32 v{a+31}, v{a+31}, v{vT+1}', f'v_cvt_pk_bf16_f32 v{hreg(u) + 7}, v{a+30}, v{a+31}']
        return o
    def epi(v):
        a = ACC[1] + 16*(v & 1); d = HHR + 8 + 8*(v & 1); o = []
        for i in range(8): o.append(f'v_cvt_pk_bf16_f32 v{d+i}, v{a+2*i}, v{a+2*i+1}')
        o += [f'v_permlane16_swap_b32 v{d+4*p+i}, v{d+4*p+2+i}' for p in range(2) for i in range(2)]
        st = []
        for p in range(2):
            if v: st.append(f's_add_u32 s{sO+p}, s{sO+p}, s{sDO+v-1}')
            st.append(('vm', f'buffer_store_dwordx4 v[{d+4*p}:{d+4*p+3}], v{vSA}, s[{SWS}:{SWS+3}], s{sO+p} offen {ST}', None))
        return o, st
    for v in range(8):
        o, st = epi(v); g = 1296 + 72*(v + 1)
        gg = g + 23
        for it in st:
            if isinstance(it, str): gaps[gg - 1].append(it)
            elif not opt.get('nost'): gaps[gg].append(it); gg += opt.get('sts', 36)
    for f in range(NF - 1):
        g = 4*f; j, i = divmod(f + LA + 1, 6)
        tags = [f'A{f+1}']
        if f + 1 >= 324 and f + 1 < 342: tags.append(f'XR{(f + 1 - 324)//2}')
        if i == 0 and j < NG:
            gaps[g+2].append(('wait', dict(vm=[f'W{j}'], lg=tags + XT.get(j, []))))
            gaps[g+3].append('s_barrier')
        else: gaps[g+3].append(('wait', dict(lg=tags)))
    ov = []
    for u in range(8 if not opt.get('nogelu') else 0): ov.append(pour2(gaps, gelu(u), 144*(u + 1) + 4, 144*(u + 2) - 2))
    ov.append(pour2(gaps, gelu(8), 1296 + 2, bar(56) - 8))
    spread(xwrite(8, hreg(8)), bar(56) - 7)
    for v in range(8): pour(gaps, epi(v)[0], 1296 + 72*(v + 1) + 3, 1296 + 72*(v + 1) + 20)
    if opt.get('verbose'):
        print('overflow', ov, 'total', sum(max(0, gload(x) - 2) for x in gaps))
        for s in (0, 144, 288, 1152, 1296, 1440, 1800): print(s, ''.join('%x' % min(15, gload(x)) for x in gaps[s:s+144]))
    k.wait(lg=['A0'])
    for n in range(N):
        f, tb = divmod(n, 4); j, fi = divmod(f, 6); a = AR + 4*fi
        if j < 54:
            kl, h = divmod(fi, 2); ks = 3*(j % 6) + kl
            if h: tb = 3 - tb
            d = ACC[(j // 6) & 1] + 16*h + 4*tb; b = bh2(ks, tb)
        else:
            v, r = divmod(j - 54, 3); ks = 6*r + fi
            d = ACC[1] + 16*(v & 1) + 4*tb; b = bhh(ks, tb)
        if n in (144, 1296, 1368): stamp()
        k(f'{MF} v[{d}:{d+3}], v[{a}:{a+3}], {b}, ' + (f'v[{d}:{d+3}]' if ks else '0'))
        for it in gsort(gaps[n]): k.item(it)
    o, st = epi(8)
    k('s_nop 4')
    for it in o[:8] + ['s_nop 0'] + o[8:] + st: k.item(it)
    STP.end(sW, SWS)
    k(f'END_{name}:')
    k('s_endpgm')
    return k
if __name__ == '__main__':
    import chk
    k = build(stamps=True, opt=dict(verbose=True))
    t = assemble_file([k])
    open('k45.s', 'w').write(t)
    e = chk.check(t) + chk.check_waits(t, k.name)
    print('\n'.join(e[:40])); print(len(e), 'problems')
```

```python
import struct
from asmlib import *
from layout import *
def f2u(x): return struct.unpack('<I', struct.pack('<f', x))[0]
SWS, SX = 8, 12
sN, sP, sT0, sT1, sLO, sHI = 16, 17, 18, 19, 20, 21
def build(which, name=None, stamps=False, opt=None, slot=None):
    opt = opt or {}
    name = name or f'r{which}_kernel'
    NP = 16 if which == 1 else 8
    k = E(name, 256, 576, lds=9*768 + 1024, vgpr=128)
    STP = Stamps(k, stamps, slot if slot is not None else 2*which)
    k('s_cmp_ge_u32 s2, 256')
    k(f's_cbranch_scc1 END_{name}')
    STP.begin()
    k('s_load_dwordx2 s[4:5], s[0:1], 104')
    k(f's_load_dwordx2 s[6:7], s[0:1], {0 if which == 1 else 88}')
    vP, vRM, vL4, vL16, vTB = 3, 4, 5, 6, 7
    MOD, X, ACC, TAB, LD = 8, 20, 24, 32, 56
    k(f'''v_lshrrev_b32 v1, 6, v0
    v_and_b32 v0, 63, v0
    v_readfirstlane_b32 s{sN}, v1
    v_and_b32 v1, 7, v0
''')
    if which == 1:
        k(f'''v_lshrrev_b32 v2, 5, v0
        v_lshlrev_b32 v{vP}, 4, v1
        v_lshl_or_b32 v{vP}, v2, 9, v{vP}
        v_bfe_u32 v2, v0, 3, 1
        v_lshl_or_b32 v{vP}, v2, 8, v{vP}
        v_bfe_u32 v2, v0, 4, 1
        v_lshl_or_b32 v{vP}, v2, 7, v{vP}''')
    else: vP = vL16
    k(f'''v_lshrrev_b32 v2, 3, v0
    v_mul_u32_u24 v{vRM}, 1152, v1
    v_lshl_add_u32 v{vRM}, v2, 4, v{vRM}
    v_lshlrev_b32 v{vL4}, 2, v0
    v_lshlrev_b32 v{vL16}, 4, v0
    s_mul_i32 s{sP}, s2, {9216*NP}
    s_lshl_b32 s{sT0}, s{sN}, 10
    s_add_u32 s{sP}, s{sP}, s{sT0}
    s_add_u32 s{sP}, s{sP}, {PART1 if which == 1 else PART2}
    s_mul_i32 s22, s2, 9216
    s_add_u32 s23, s22, s{sT0}
    s_add_u32 s23, s23, {X1}
    s_lshl_b32 s{sT0}, s{sN}, 7
    s_add_u32 s22, s22, s{sT0}
    s_lshl_b32 s{sT0}, s{sN}, 8
    s_add_u32 s{sT0}, s{sT0}, {MODP + (2 if which == 1 else 5)*2304}
    s_mov_b32 s{sLO}, 0x3f80
    s_mov_b32 s{sHI}, 0x3f800000
    s_waitcnt lgkmcnt(0)''')
    srd(k, SWS, 4, WS_BYTES)
    def part(g):
        k.vm(f'buffer_load_dwordx4 v[{LD+4*g}:{LD+4*g+3}], v{vP}, s[{SWS}:{SWS+3}], s{sP} offen', f'P{g}')
        if g + 1 < NP: k(f's_add_u32 s{sP}, s{sP}, 9216')
    nv = 3 if which == 1 else 1
    first = opt.get('first', 4)
    for g in range(first): part(g)
    for p in range(4):
        k.vm(f'buffer_load_dword v{MOD+3*p}, v{vL4}, s[{SWS}:{SWS+3}], s{sT0} offen', 'mod')
        if which == 1:
            k.vm(f'buffer_load_dword v{MOD+3*p+1}, v{vL4}, s[{SWS}:{SWS+3}], s{sT0} offen offset:2304', 'mod')
            k(f's_add_u32 s{sT1}, s{sT0}, 4608')
            k.vm(f'buffer_load_dword v{MOD+3*p+2}, v{vL4}, s[{SWS}:{SWS+3}], s{sT1} offen', 'mod')
        if p < 3: k(f's_add_u32 s{sT0}, s{sT0}, {3456*4}')
    for g in range(first, NP): part(g)
    srd(k, SX, 6, 2048*1152)
    if which == 1: k.vm(f'buffer_load_dwordx4 v[{X}:{X+3}], v{vRM}, s[{SX}:{SX+3}], s22 offen', 'X')
    else: k.vm(f'buffer_load_dwordx4 v[{X}:{X+3}], v{vL16}, s[{SWS}:{SWS+3}], s23 offen', 'X')
    if opt.get('pfc'):
        lab, nb = opt['pfc']
        k(f's_cmp_ge_u32 s2, 16')
        k(f's_cbranch_scc1 NOPF_{name}')
        code_prefetch(k, lab, nb, sN, 24, 120, 121)
        k.vq.pop()
        k(f'NOPF_{name}:')
    STP.mark()
    k(f'''s_mul_i32 s{sT0}, s{sN}, 768
    v_add_u32 v{vL4}, s{sT0}, v{vL4}
    v_lshlrev_b32 v2, 5, v2
    v_add_u32 v{vTB}, s{sT0}, v2''')
    def acc(g):
        k.wait(vm=[f'P{g}'])
        for i in range(4):
            s = LD + 4*g + i
            if g == 0:
                k(f'v_lshlrev_b32 v{ACC+2*i}, 16, v{s}')
                k(f'v_and_b32 v{ACC+2*i+1}, 0xffff0000, v{s}')
            else:
                k(f'v_dot2c_f32_bf16 v{ACC+2*i}, s{sLO}, v{s}')
                k(f'v_dot2c_f32_bf16 v{ACC+2*i+1}, s{sHI}, v{s}')
    for g in range(first): acc(g)
    k.wait(vm=['mod'])
    for i in range(nv):
        k(f'v_add_f32 v{MOD+i}, v{MOD+i}, v{MOD+3+i}')
        k(f'v_add_f32 v{MOD+6+i}, v{MOD+6+i}, v{MOD+9+i}')
    for i in range(nv): k(f'v_add_f32 v{MOD+i}, v{MOD+i}, v{MOD+6+i}')
    for i in range(nv): k(f'v_cvt_pk_bf16_f32 v{MOD+i}, v{MOD+i}, v{MOD+i}')
    for i in range(nv): k(f'v_lshlrev_b32 v{MOD+i}, 16, v{MOD+i}')
    if which == 1:
        k(f'v_add_f32 v{MOD+2}, 1.0, v{MOD+2}')
        k(f'v_cvt_pk_bf16_f32 v{MOD+2}, v{MOD+2}, v{MOD+2}')
        k(f'v_lshlrev_b32 v{MOD+2}, 16, v{MOD+2}')
    for i in range(nv): k.ds(f'ds_write_b32 v{vL4}, v{MOD+i} offset:{256*i}')
    for i in range(nv):
        for h in range(2): k.ds(f'ds_read_b128 v[{TAB+8*i+4*h}:{TAB+8*i+4*h+3}], v{vTB} offset:{256*i+16*h}', 'T')
    for g in range(first, NP): acc(g)
    STP.mark()
    k.wait(vm=['X'], lg0=True)
    XF = LD
    for i in range(4):
        k(f'v_lshlrev_b32 v{XF+2*i}, 16, v{X+i}')
        k(f'v_and_b32 v{XF+2*i+1}, 0xffff0000, v{X+i}')
    if which == 1:
        for i in range(4): k(f'v_permlane16_swap_b32 v{ACC+i}, v{ACC+4+i}')
        k('s_nop 1')
    for i in range(8): k(f'v_fma_f32 v{XF+i}, v{TAB+i}, v{ACC+i}, v{XF+i}')
    ST = opt.get('st', 'sc1' if which == 1 else '')
    if which == 2:
        for i in range(4): k(f'v_cvt_pk_bf16_f32 v{X+i}, v{XF+2*i}, v{XF+2*i+1}')
        k.vm(f'buffer_store_dwordx4 v[{X}:{X+3}], v{vRM}, s[{SX}:{SX+3}], s22 offen {ST}')
    else:
        a, b, c, d = ACC, ACC+1, ACC+2, ACC+3
        k(f'''v_add_f32 v{a}, v{XF}, v{XF+1}
        v_mul_f32 v{b}, v{XF}, v{XF}
        v_add_f32 v{c}, v{XF+2}, v{XF+3}
        v_mul_f32 v{d}, v{XF+1}, v{XF+1}''')
        for i in range(2, 8, 2):
            k(f'v_fmac_f32 v{b}, v{XF+i}, v{XF+i}')
            k(f'v_fmac_f32 v{d}, v{XF+i+1}, v{XF+i+1}')
            if i > 2:
                k(f'v_add_f32 v{a}, v{a}, v{XF+i}')
                k(f'v_add_f32 v{c}, v{c}, v{XF+i+1}')
        k(f'''v_add_f32 v{a}, v{a}, v{c}
        v_add_f32 v{b}, v{b}, v{d}
        v_cvt_pk_bf16_f32 v{X}, v{XF}, v{XF+1}
        v_cvt_pk_bf16_f32 v{X+1}, v{XF+2}, v{XF+3}
        v_permlane32_swap_b32 v{a}, v{b}
        v_cvt_pk_bf16_f32 v{X+2}, v{XF+4}, v{XF+5}
        v_cvt_pk_bf16_f32 v{X+3}, v{XF+6}, v{XF+7}
        v_add_f32 v{a}, v{a}, v{b}
        v_lshlrev_b32 v{c}, 3, v1
        v_mov_b32 v{b}, v{a}
        v_lshrrev_b32 v2, 5, v0
        v_add_u32 v{c}, {9*768}, v{c}
        v_permlane16_swap_b32 v{a}, v{b}
        s_lshl_b32 s{sT0}, s{sN}, 6
        v_lshl_add_u32 v{d}, v2, 2, v{c}
        v_add_f32 v{a}, v{a}, v{b}
        v_add_u32 v{d}, s{sT0}, v{d}
        s_nop 0
        v_add_f32_dpp v{a}, v{a}, v{a} row_ror:8 row_mask:0xf bank_mask:0xf''')
        k.ds(f'ds_write_b32 v{d}, v{a}')
        k.vm(f'buffer_store_dwordx4 v[{X}:{X+3}], v{vL16}, s[{SWS}:{SWS+3}], s23 offen {ST}')
        k(f'''s_lshr_b32 s{sT0}, s2, 1
        s_mul_i32 s{sT0}, s{sT0}, 18432
        s_and_b32 s{sT1}, s2, 1
        s_lshl_b32 s{sT1}, s{sT1}, 7
        s_add_u32 s{sT0}, s{sT0}, s{sT1}
        s_lshl_b32 s{sT1}, s{sN}, 11
        s_add_u32 s{sT0}, s{sT0}, s{sT1}
        s_add_u32 s{sT0}, s{sT0}, {H2}
        v_lshrrev_b32 v2, 3, v0
        v_lshlrev_b32 v2, 8, v2
        v_lshl_or_b32 v2, v1, 4, v2''')
        k.wait(lg0=True)
        k('s_barrier')
        R = LD + 8
        for n in range(9): k.ds(f'ds_read_b64 v[{R+2*n}:{R+2*n+1}], v{c} offset:{64*n}', f'S{n}')
        k(f's_mov_b32 s{sLO}, {f2u(1/576)}')
        k(f's_mov_b32 s{sHI}, {f2u(1e-5)}')
        k.wait(lg=['S3'])
        k(f'v_pk_add_f32 v[{R}:{R+1}], v[{R}:{R+1}], v[{R+2}:{R+3}]')
        k(f'v_pk_add_f32 v[{R+4}:{R+5}], v[{R+4}:{R+5}], v[{R+6}:{R+7}]')
        k.wait(lg0=True)
        k(f'''v_pk_add_f32 v[{R+8}:{R+9}], v[{R+8}:{R+9}], v[{R+10}:{R+11}]
        v_pk_add_f32 v[{R+12}:{R+13}], v[{R+12}:{R+13}], v[{R+14}:{R+15}]
        v_pk_add_f32 v[{R}:{R+1}], v[{R}:{R+1}], v[{R+4}:{R+5}]
        v_pk_add_f32 v[{R+8}:{R+9}], v[{R+8}:{R+9}], v[{R+16}:{R+17}]
        v_pk_add_f32 v[{R}:{R+1}], v[{R}:{R+1}], v[{R+12}:{R+13}]
        v_pk_add_f32 v[{R}:{R+1}], v[{R}:{R+1}], v[{R+8}:{R+9}]
        v_mul_f32 v{R}, s{sLO}, v{R}
        v_mul_f32 v{R+1}, s{sLO}, v{R+1}
        v_fma_f32 v{R+1}, -v{R}, v{R}, v{R+1}
        v_max_f32 v{R+1}, 0, v{R+1}
        v_add_f32 v{R+1}, s{sHI}, v{R+1}
        v_rsq_f32 v{R+1}, v{R+1}''')
        for i in range(8): k(f'v_sub_f32 v{XF+i}, v{XF+i}, v{R}')
        for i in range(8): k(f'v_mul_f32 v{XF+i}, v{XF+i}, v{R+1}')
        for i in range(8): k(f'v_fma_f32 v{XF+i}, v{XF+i}, v{TAB+16+i}, v{TAB+8+i}')
        for i in range(4): k(f'v_cvt_pk_bf16_f32 v{ACC+i}, v{XF+2*i}, v{XF+2*i+1}')
        k.vm(f'buffer_store_dwordx4 v[{ACC}:{ACC+3}], v2, s[{SWS}:{SWS+3}], s{sT0} offen {ST}')
    STP.end(sN, SWS, nw=9)
    k(f'END_{name}:')
    k('s_endpgm')
    return k
if __name__ == '__main__':
    import chk
    ks = [build(1, stamps=True), build(2, stamps=True)]
    t = assemble_file(ks)
    open('kr.s', 'w').write(t)
    e = chk.check(t)
    for k in ks: e += chk.check_waits(t, k.name)
    print('\n'.join(e[:40])); print(len(e), 'problems')
```

```python
WS_BYTES = 268435456
XN   = 0x0000000
MODP = 0x0240000
CSV  = 0x0250000
STAT = 0x0260000
OBUF = 0x0400000
X1   = 0x1400000
YB   = 0x1a00000
HH   = 0x2000000
STAMP= 0xc800000
PART1 = 0x4000000
PART2 = 0x6800000
H2 = YB
```

```python
import sys
sys.path.insert(0, 'gen')
import asmlib, chk, k1, k2c, kr
KN = 'adaLN_cond__gqa_block_cached__glu_gated_geglu__prompt'
def header():
    out = []
    for l in open(f'cdna_kernels/{KN}.s.ref'):
        if l.startswith('; Override'): break
        out.append(l)
    return ''.join(out)
def make(stamps=False, opts=None, check=True, upto=5):
    o = dict(opts or {})
    o[1] = dict(o.get(1) or {})
    if o[1].get('pfc', 1): o[1]['pfc'] = (KN + '_kernel', o[1].get('pfn', 5 if upto < 4 else 10))
    o[3] = dict(o.get(3) or {})
    if o[3].get('pfc'): o[3]['pfc'] = ('k45_kernel', o[3]['pfc'])
    ks = [k1.build(stamps=stamps, opt=o.get(1)), k2c.build(name=KN + '_kernel', stamps=stamps, opt=o.get(2)), kr.build(1, stamps=stamps, opt=o.get(3))]
    if upto >= 4:
        import k45
        ks += [k45.build(stamps=stamps, opt=o.get(4)), kr.build(2, stamps=stamps, opt=o.get(5))]
    ls = list(ks)
    if o.get('rep'): ls.insert(o['rep'], ks[o['rep']])
    t = asmlib.assemble_file(ks, launches=ls, header=header())
    if check:
        e = chk.check(t)
        for k in ks: e += chk.check_waits(t, k.name, forced={f'TAIL_{k.name}': 2})
        assert not e, e[:10]
    return t
if __name__ == '__main__':
    path = sys.argv[1] if len(sys.argv) > 1 else f'cdna_kernels/{KN}.s'
    opts = eval(sys.argv[2]) if len(sys.argv) > 2 else None
    open(path, 'w').write(make(opts=opts, upto=int(sys.argv[3]) if len(sys.argv) > 3 else 5))
    print('wrote', path)
```
